```python
import torch

def _softmax(x, axis=-1):
    return torch.softmax(x, dim=axis)
def _gelu(x):
    return torch.nn.functional.gelu(x, approximate="tanh")
def _silu(x):
    return torch.nn.functional.silu(x)
def _sigmoid(x):
    return torch.sigmoid(x)
def _layernorm(x, axis=-1, eps=1e-5):
    m = x.mean(dim=axis, keepdim=True)
    v = x.var(dim=axis, keepdim=True, unbiased=False)
    return (x - m) / torch.sqrt(v + eps)
def _scatter_add(tgt, idx, src, axis=0):
    return tgt.clone().index_add_(axis, idx, src)
def _segment_sum(src, seg, n):
    out = torch.zeros((n,) + src.shape[1:], dtype=src.dtype)
    return out.index_add_(0, seg, src)
def _pad(x, pw):
    flat = tuple(v for pair in reversed(pw) for v in pair)
    return torch.nn.functional.pad(x, flat)

kernel_name = 'concat_heads__mha_block_cached__gqa_block_cached__decode'

def setup_inputs():

    _w = (lambda a: (lambda t: t.to(torch.bfloat16) if t.is_floating_point() else t)(torch.as_tensor(a)))
    def _A_setup():
        B, Sq, D = 1, 1, 512
        H, Sk, Dh = 32, 8192, 128
        return {
            "x": _w((lambda *s: torch.randn(*s, dtype=torch.bfloat16) * 0.8)(B, Sq, D)),
            "k_cache": _w((lambda *s: torch.randn(*s, dtype=torch.bfloat16) * 0.8)(B, H, Sk, Dh)),
            "v_cache": _w((lambda *s: torch.randn(*s, dtype=torch.bfloat16) * 0.05)(B, H, Sk, Dh)),
            "wq": _w((lambda *s: torch.randn(*s, dtype=torch.bfloat16) * 0.8)(D, H * Dh) * (D ** -0.5)),
            "wo": _w((lambda *s: torch.randn(*s, dtype=torch.bfloat16) * 0.05)(H * Dh, D) * ((H * Dh) ** -0.5)),
        }
    _A_in = _A_setup()

    def _B_setup():
        B, Sq, D = 1, 1, 512
        Hq, Hkv, Sk, Dh = 32, 32, 8192, 128
        assert Hq % Hkv == 0, (Hq, Hkv)
        return {
            "x": _w((lambda *s: torch.randn(*s, dtype=torch.bfloat16) * 0.8)(B, Sq, D)),
            "k_cache": _w((lambda *s: torch.randn(*s, dtype=torch.bfloat16) * 0.8)(B, Hkv, Sk, Dh)),
            "v_cache": _w((lambda *s: torch.randn(*s, dtype=torch.bfloat16) * 0.05)(B, Hkv, Sk, Dh)),
            "wq": _w((lambda *s: torch.randn(*s, dtype=torch.bfloat16) * 0.8)(D, Hq * Dh) * (D ** -0.5)),
            "wo": _w((lambda *s: torch.randn(*s, dtype=torch.bfloat16) * 0.05)(Hq * Dh, D) * ((Hq * Dh) ** -0.5)),
        }
    _B_in = _B_setup()

    return {
        "A_x": _A_in["x"],
        "A_k_cache": _A_in["k_cache"],
        "A_v_cache": _A_in["v_cache"],
        "A_wq": _A_in["wq"],
        "A_wo": _A_in["wo"],
        "B_x": _B_in["x"],
        "B_k_cache": _B_in["k_cache"],
        "B_v_cache": _B_in["v_cache"],
        "B_wq": _B_in["wq"],
        "B_wo": _B_in["wo"],
    }

def reference(A_x, A_k_cache, A_v_cache, A_wq, A_wo, B_x, B_k_cache, B_v_cache, B_wq, B_wo):
    def _A_ref(x, k_cache, v_cache, wq, wo):
        B, Sq, D = x.shape
        H, Dh = 32, 128
        q = (lambda x, *d: x.permute(*d))((x @ wq).reshape(B, Sq, H, Dh), 0, 2, 1, 3)
        scores = torch.einsum("bhqd,bhkd->bhqk", q, k_cache) * (Dh ** -0.5)
        p = _softmax(scores, axis=-1)
        o = torch.einsum("bhqk,bhkd->bhqd", p, v_cache)
        return (lambda x, *d: x.permute(*d))(o, 0, 2, 1, 3).reshape(B, Sq, H * Dh) @ wo

    def _B_ref(x, k_cache, v_cache, wq, wo):
        B, Sq, D = x.shape
        Hq, Dh = 32, 128
        Hkv = k_cache.shape[1]
        rep = Hq // Hkv
        q = (lambda x, *d: x.permute(*d))((x @ wq).reshape(B, Sq, Hq, Dh), 0, 2, 1, 3)
        k = (lambda x, n, axis: torch.repeat_interleave(x, n, dim=axis))(k_cache, rep, axis=1)
        v = (lambda x, n, axis: torch.repeat_interleave(x, n, dim=axis))(v_cache, rep, axis=1)
        scores = torch.einsum("bhqd,bhkd->bhqk", q, k) * (Dh ** -0.5)
        p = _softmax(scores, axis=-1)
        o = torch.einsum("bhqk,bhkd->bhqd", p, v)
        return (lambda x, *d: x.permute(*d))(o, 0, 2, 1, 3).reshape(B, Sq, Hq * Dh) @ wo

    a = _A_ref(A_x, A_k_cache, A_v_cache, A_wq, A_wo)
    b = _B_ref(B_x, B_k_cache, B_v_cache, B_wq, B_wo)
    return torch.concatenate([a, b], axis=-1)
```

```python
import sys

NAME = "concat_heads__mha_block_cached__gqa_block_cached__decode"
OUT = sys.argv[1] if len(sys.argv) > 1 else "cdna_kernels/%s.s" % NAME
NT = " nt"

HEADER = """; Kernarg layout for this problem (104 bytes, ptrs only, base s[0:1]):
; @launch kernel=attn_part_kernel grid=(256,1,1) block=(512,1,1) lds=40960
; @launch kernel=combine_kernel grid=(32,1,1) block=(256,1,1) lds=4096
.amdgcn_target "amdgcn-amd-amdhsa--gfx950"
.text
"""

L = []
def e(s=""):
    L.append("    " + s if s and not s.endswith(":") else s)

DPP = " row_mask:0xf bank_mask:0xf"

S_W = 3; S_H64 = 4; S_SPLIT = 5; S_B = 6; S_H = 7
S_PX = 8
S_PK = 10
S_PV = 12
S_PWQ = 14
S_PWO = 38
SRD_PF = 40
SRD_WQ = 44
SRD_WO = 48
SRD_X = 52
SRD_WS = 56
S_VB = 60
S_C4 = 62; S_C8 = 63; S_C12 = 64
S_T0 = 65; S_T1 = 66; S_T2 = 67; S_CNT = 68
S_LOG2E = 69; S_SCALE = 70
S_R0 = 72
S_MASK = 16
S_MASK = 70
S_LOG2E = 65; S_SCALE = 66; S_T0 = 67; S_T1 = 68; S_CNT = 69
S_R0 = 16
S_T2 = 20

V_TID = 0
V_LANE = 1
V_OFF16 = 2
V_WQOFF = 3
V_X = 4
V_Q = 8
V_SC = 12
V_SCN = 16
V_P = 20
V_T = 24
V_ACC = 32
V_M = 40
V_L = 41
V_A0 = 42
V_RING = 64
V_WQ = 128
V_WO = 192

LDS_Q = 0
LDS_O = 4096
LDS_ML = 8192
LDS_Y = 8448

def unpack(dst_lo, dst_hi, src):
    e("v_lshlrev_b32 v%d, 16, v%d" % (dst_lo, src))
    e("v_and_b32 v%d, 0xffff0000, v%d" % (dst_hi, src))

def fma_tile(acc, tile, vsrc, lane):
    for r in range(4):
        unpack(V_T + 2 * r, V_T + 2 * r + 1, tile + r)
    for d in range(8):
        e("v_fmac_f32_dpp v%d, v%d, v%d row_newbcast:%d%s" % (acc + d, vsrc, V_T + d, lane, DPP))

def row_reduce8(acc):
    e("s_nop 1")
    for d in range(4):
        e("v_permlane32_swap_b32 v%d, v%d" % (acc + d, acc + d + 4))
    e("s_nop 1")
    for d in range(4):
        e("v_add_f32 v%d, v%d, v%d" % (acc + d, acc + d, acc + d + 4))
    e("s_nop 1")
    for d in range(2):
        e("v_permlane16_swap_b32 v%d, v%d" % (acc + d, acc + d + 2))
    e("s_nop 1")
    for d in range(2):
        e("v_add_f32 v%d, v%d, v%d" % (acc + d, acc + d, acc + d + 2))

def wave_allreduce(op, v):
    for r in (8, 4, 2, 1):
        e("s_nop 1")
        e("%s_dpp v%d, v%d, v%d row_ror:%d%s" % (op, v, v, v, r, DPP))
    e("s_nop 1")
    for i in range(4):
        e("v_readlane_b32 s%d, v%d, %d" % (S_R0 + i, v, 16 * i))
    e("s_nop 1")
    e("v_mov_b32 v%d, s%d" % (v, S_R0))
    for i in range(1, 4):
        e("%s v%d, s%d, v%d" % (op, v, S_R0 + i, v))

def ld_tile(dst, srd, i, voff, nt=""):
    soff = ["0", "s%d" % S_C4, "s%d" % S_C8, "s%d" % S_C12][i // 4]
    e("buffer_load_dwordx4 v[%d:%d], v%d, s[%d:%d], %s offen offset:%d%s" %
      (dst, dst + 3, voff, srd, srd + 3, soff, (i % 4) * 1024, nt))

def k1():
    e(".globl attn_part_kernel")
    e(".p2align 8")
    e(".type attn_part_kernel,@function")
    e("attn_part_kernel:")
    e("s_cmp_ge_u32 s2, 256")
    e("s_cbranch_scc1 L1_end")
    e("s_load_dwordx16 s[16:31], s[0:1], 0")
    e("s_load_dwordx4 s[32:35], s[0:1], 64")
    e("s_load_dwordx2 s[36:37], s[0:1], 96")
    e("v_lshrrev_b32 v5, 6, v0")
    e("v_and_b32 v%d, 63, v0" % V_LANE)
    e("s_nop 0")
    e("v_readfirstlane_b32 s%d, v5" % S_W)
    e("s_and_b32 s%d, s2, 63" % S_H64)
    e("s_lshr_b32 s%d, s2, 6" % S_SPLIT)
    e("s_lshr_b32 s%d, s%d, 5" % (S_B, S_H64))
    e("s_and_b32 s%d, s%d, 31" % (S_H, S_H64))
    e("v_lshlrev_b32 v%d, 4, v%d" % (V_OFF16, V_LANE))
    e("v_lshrrev_b32 v5, 4, v%d" % V_LANE)
    e("v_and_b32 v6, 15, v%d" % V_LANE)
    e("v_lshlrev_b32 v7, 13, v5")
    e("v_lshl_add_u32 v%d, v6, 4, v7" % V_WQOFF)
    e("v_lshl_add_u32 v7, v6, 2, v5")
    e("v_lshlrev_b32 v7, 1, v7")
    e("s_mov_b32 s%d, 4096" % S_C4)
    e("s_mov_b32 s%d, 8192" % S_C8)
    e("s_mov_b32 s%d, 12288" % S_C12)
    e("s_mov_b32 s%d, 0x3fb8aa3b" % S_LOG2E)
    e("s_mov_b32 s%d, 0x3db504f3" % S_SCALE)
    e("s_waitcnt lgkmcnt(0)")
    e("s_cmp_eq_u32 s%d, 0" % S_B)
    e("s_cselect_b64 s[%d:%d], s[16:17], s[26:27]" % (S_PX, S_PX + 1))
    e("s_cselect_b64 s[%d:%d], s[18:19], s[28:29]" % (S_PK, S_PK + 1))
    e("s_cselect_b64 s[%d:%d], s[20:21], s[30:31]" % (S_PV, S_PV + 1))
    e("s_cselect_b64 s[%d:%d], s[22:23], s[32:33]" % (S_PWQ, S_PWQ + 1))
    e("s_cselect_b64 s[%d:%d], s[24:25], s[34:35]" % (S_PWO, S_PWO + 1))
    e("s_lshl_b32 s%d, s%d, 7" % (S_T0, S_W))
    e("s_add_u32 s%d, s%d, s%d" % (SRD_X, S_PX, S_T0))
    e("s_addc_u32 s%d, s%d, 0" % (SRD_X + 1, S_PX + 1))
    e("s_mov_b32 s%d, 128" % (SRD_X + 2))
    e("s_mov_b32 s%d, 0x00020000" % (SRD_X + 3))
    e("s_lshl_b32 s%d, s%d, 8" % (S_T0, S_H))
    e("s_lshl_b32 s%d, s%d, 19" % (S_T1, S_W))
    e("s_add_u32 s%d, s%d, s%d" % (S_T0, S_T0, S_T1))
    e("s_add_u32 s%d, s%d, s%d" % (SRD_WQ, S_PWQ, S_T0))
    e("s_addc_u32 s%d, s%d, 0" % (SRD_WQ + 1, S_PWQ + 1))
    e("s_mov_b32 s%d, %d" % (SRD_WQ + 2, 63 * 8192 + 256))
    e("s_mov_b32 s%d, 0x00020000" % (SRD_WQ + 3))
    e("s_lshl_b32 s%d, s%d, 21" % (S_T0, S_H))
    e("s_lshl_b32 s%d, s%d, 19" % (S_T1, S_SPLIT))
    e("s_add_u32 s%d, s%d, s%d" % (S_T0, S_T0, S_T1))
    e("s_lshl_b32 s%d, s%d, 16" % (S_T1, S_W))
    e("s_add_u32 s%d, s%d, s%d" % (S_T0, S_T0, S_T1))
    e("s_add_u32 s%d, s%d, s%d" % (SRD_PF, S_PK, S_T0))
    e("s_addc_u32 s%d, s%d, 0" % (SRD_PF + 1, S_PK + 1))
    e("s_mov_b32 s%d, 16384" % (SRD_PF + 2))
    e("s_mov_b32 s%d, 0x00020000" % (SRD_PF + 3))
    e("s_add_u32 s%d, s%d, s%d" % (S_VB, S_PV, S_T0))
    e("s_addc_u32 s%d, s%d, 0" % (S_VB + 1, S_PV + 1))
    e("s_lshl_b32 s%d, s%d, 17" % (S_T0, S_H))
    e("s_lshl_b32 s%d, s%d, 14" % (S_T1, S_W))
    e("s_add_u32 s%d, s%d, s%d" % (S_T0, S_T0, S_T1))
    e("s_add_u32 s%d, s%d, s%d" % (SRD_WO, S_PWO, S_T0))
    e("s_addc_u32 s%d, s%d, 0" % (SRD_WO + 1, S_PWO + 1))
    e("s_mov_b32 s%d, 16384" % (SRD_WO + 2))
    e("s_mov_b32 s%d, 0x00020000" % (SRD_WO + 3))
    e("s_mov_b32 s%d, s36" % SRD_WS)
    e("s_mov_b32 s%d, s37" % (SRD_WS + 1))
    e("s_mov_b32 s%d, %d" % (SRD_WS + 2, 256 * 2048 + 256 * 8))
    e("s_mov_b32 s%d, 0x00020000" % (SRD_WS + 3))
    e("buffer_load_ushort v%d, v7, s[%d:%d], 0 offen" % (V_X, SRD_X, SRD_X + 3))
    e("s_mov_b32 s%d, 0" % S_T0)
    for i in range(16):
        e("buffer_load_dwordx4 v[%d:%d], v%d, s[%d:%d], s%d offen" %
          (V_WQ + 4 * i, V_WQ + 4 * i + 3, V_WQOFF, SRD_WQ, SRD_WQ + 3, S_T0))
        if i != 15:
            e("s_add_u32 s%d, s%d, 32768" % (S_T0, S_T0))
    for i in range(16):
        ld_tile(V_RING + 4 * i, SRD_PF, i, V_OFF16, NT)
    for i in range(16):
        ld_tile(V_WO + 4 * i, SRD_WO, i, V_OFF16)
    e("s_add_u32 s%d, s%d, 16384" % (SRD_PF, SRD_PF))
    e("s_addc_u32 s%d, s%d, 0" % (SRD_PF + 1, SRD_PF + 1))
    for i in range(16):
        m = (0x00010001 << i) & 0xffffffff
        e("s_mov_b32 s%d, 0x%08x" % (S_MASK + 2 * i, m))
        e("s_mov_b32 s%d, 0x%08x" % (S_MASK + 2 * i + 1, m))
    for d in range(8):
        e("v_mov_b32 v%d, 0" % (V_ACC + d))
    e("s_waitcnt vmcnt(47)")
    e("v_lshlrev_b32 v%d, 16, v%d" % (V_X, V_X))
    e("s_nop 1")
    for i in range(16):
        e("s_waitcnt vmcnt(%d)" % (47 - i - 1 + 0 if False else 32 + 15 - i))
        fma_tile(V_ACC, V_WQ + 4 * i, V_X, i)
    row_reduce8(V_ACC)
    e("v_lshrrev_b32 v5, 4, v%d" % V_LANE)
    e("v_and_b32 v6, 15, v%d" % V_LANE)
    e("v_lshlrev_b32 v7, 3, v5")
    e("v_lshl_add_u32 v7, v6, 5, v7")
    e("s_lshl_b32 s%d, s%d, 9" % (S_T0, S_W))
    e("v_add_u32 v%d, s%d, v7" % (V_A0, S_T0))
    e("ds_write_b64 v%d, v[%d:%d] offset:%d" % (V_A0, V_ACC, V_ACC + 1, LDS_Q))
    e("s_waitcnt lgkmcnt(0)")
    e("s_barrier")
    e("v_lshlrev_b32 v7, 5, v6")
    for w in range(8):
        e("ds_read_b128 v[%d:%d], v7 offset:%d" % (V_WQ + 8 * w, V_WQ + 8 * w + 3, LDS_Q + w * 512))
        e("ds_read_b128 v[%d:%d], v7 offset:%d" % (V_WQ + 8 * w + 4, V_WQ + 8 * w + 7, LDS_Q + w * 512 + 16))
    e("s_waitcnt lgkmcnt(0)")
    for w in range(1, 8):
        for d in range(8):
            e("v_add_f32 v%d, v%d, v%d" % (V_WQ + d, V_WQ + d, V_WQ + 8 * w + d))
    for r in range(4):
        e("v_cvt_pk_bf16_f32 v%d, v%d, v%d" % (V_Q + r, V_WQ + 2 * r, V_WQ + 2 * r + 1))
    e("s_mov_b32 s%d, 0" % S_CNT)
    e("L1_kloop:")
    for g in range(4):
        e("s_waitcnt vmcnt(12)")
        for r in range(4):
            for a in range(4):
                t = V_RING + 4 * (4 * g + a) + r
                if r == 0:
                    e("v_dot2_f32_bf16 v%d, v%d, v%d, 0" % (V_P + a, t, V_Q + r))
                else:
                    e("v_dot2_f32_bf16 v%d, v%d, v%d, v%d" % (V_P + a, t, V_Q + r, V_P + a))
        for a in range(4):
            ld_tile(V_RING + 4 * (4 * g + a), SRD_PF, 4 * g + a, V_OFF16, NT)
        for ror in (8, 4, 2, 1):
            for a in range(4):
                e("v_add_f32_dpp v%d, v%d, v%d row_ror:%d%s" % (V_P + a, V_P + a, V_P + a, ror, DPP))
        for a in range(4):
            i = 4 * g + a
            e("v_cndmask_b32 v%d, v%d, v%d, s[%d:%d]" % (V_SCN, V_SCN, V_P + a, S_MASK + 2 * i, S_MASK + 2 * i + 1))
    e("v_mov_b32 v%d, v%d" % (V_SC, V_SC + 1))
    e("v_mov_b32 v%d, v%d" % (V_SC + 1, V_SC + 2))
    e("v_mov_b32 v%d, v%d" % (V_SC + 2, V_SC + 3))
    e("v_cvt_pk_bf16_f32 v%d, v%d, v%d" % (V_T, V_SCN, V_SCN))
    e("v_lshlrev_b32 v%d, 16, v%d" % (V_T, V_T))
    e("v_mul_f32 v%d, s%d, v%d" % (V_T, S_SCALE, V_T))
    e("v_cvt_pk_bf16_f32 v%d, v%d, v%d" % (V_T, V_T, V_T))
    e("v_lshlrev_b32 v%d, 16, v%d" % (V_SC + 3, V_T))
    e("s_add_u32 s%d, s%d, 16384" % (SRD_PF, SRD_PF))
    e("s_addc_u32 s%d, s%d, 0" % (SRD_PF + 1, SRD_PF + 1))
    e("s_cmp_eq_u32 s%d, 2" % S_CNT)
    e("s_cselect_b64 s[%d:%d], s[%d:%d], s[%d:%d]" % (SRD_PF, SRD_PF + 1, S_VB, S_VB + 1, SRD_PF, SRD_PF + 1))
    e("s_add_u32 s%d, s%d, 1" % (S_CNT, S_CNT))
    e("s_cmp_lt_u32 s%d, 4" % S_CNT)
    e("s_cbranch_scc1 L1_kloop")
    e("v_max_f32 v%d, v%d, v%d" % (V_M, V_SC, V_SC + 1))
    e("v_max3_f32 v%d, v%d, v%d, v%d" % (V_M, V_M, V_SC + 2, V_SC + 3))
    wave_allreduce("v_max_f32", V_M)
    for t in range(4):
        e("v_sub_f32 v%d, v%d, v%d" % (V_SC + t, V_SC + t, V_M))
    for t in range(4):
        e("v_mul_f32 v%d, s%d, v%d" % (V_SC + t, S_LOG2E, V_SC + t))
    for t in range(4):
        e("v_exp_f32 v%d, v%d" % (V_SC + t, V_SC + t))
    e("s_nop 0")
    e("v_add_f32 v%d, v%d, v%d" % (V_L, V_SC, V_SC + 1))
    e("v_add_f32 v%d, v%d, v%d" % (V_L, V_L, V_SC + 2))
    e("v_add_f32 v%d, v%d, v%d" % (V_L, V_L, V_SC + 3))
    for d in range(8):
        e("v_mov_b32 v%d, 0" % (V_ACC + d))
    e("s_mov_b32 s%d, 0" % S_CNT)
    e("L1_vloop:")
    for g in range(4):
        e("s_waitcnt vmcnt(12)")
        for a in range(4):
            fma_tile(V_ACC, V_RING + 4 * (4 * g + a), V_SC, 4 * g + a)
        for a in range(4):
            ld_tile(V_RING + 4 * (4 * g + a), SRD_PF, 4 * g + a, V_OFF16, NT)
    e("v_mov_b32 v%d, v%d" % (V_SC, V_SC + 1))
    e("v_mov_b32 v%d, v%d" % (V_SC + 1, V_SC + 2))
    e("v_mov_b32 v%d, v%d" % (V_SC + 2, V_SC + 3))
    e("s_add_u32 s%d, s%d, 16384" % (SRD_PF, SRD_PF))
    e("s_addc_u32 s%d, s%d, 0" % (SRD_PF + 1, SRD_PF + 1))
    e("s_cmp_eq_u32 s%d, 2" % S_CNT)
    e("s_cselect_b32 s%d, 0, s%d" % (SRD_PF + 2, SRD_PF + 2))
    e("s_add_u32 s%d, s%d, 1" % (S_CNT, S_CNT))
    e("s_cmp_lt_u32 s%d, 4" % S_CNT)
    e("s_cbranch_scc1 L1_vloop")
    row_reduce8(V_ACC)
    e("ds_write_b64 v%d, v[%d:%d] offset:%d" % (V_A0, V_ACC, V_ACC + 1, LDS_O))
    wave_allreduce("v_add_f32", V_L)
    e("s_lshl_b32 s%d, s%d, 3" % (S_T0, S_W))
    e("v_mov_b32 v5, s%d" % S_T0)
    e("s_mov_b64 exec, 1")
    e("ds_write_b64 v5, v[%d:%d] offset:%d" % (V_M, V_L, LDS_ML))
    e("s_mov_b64 exec, -1")
    e("s_waitcnt lgkmcnt(0)")
    e("s_barrier")
    ML = V_WQ
    OP = V_WQ + 16
    e("v_mov_b32 v5, 0")
    for i in range(4):
        e("ds_read_b128 v[%d:%d], v5 offset:%d" % (ML + 4 * i, ML + 4 * i + 3, LDS_ML + 16 * i))
    e("s_lshl_b32 s%d, s%d, 6" % (S_T0, S_W))
    e("v_lshl_add_u32 v5, v6, 2, s%d" % S_T0)
    for w in range(8):
        e("ds_read_b32 v%d, v5 offset:%d" % (OP + w, LDS_O + 512 * w))
    e("s_waitcnt lgkmcnt(8)")
    e("v_max3_f32 v%d, v%d, v%d, v%d" % (V_M, ML + 0, ML + 2, ML + 4))
    e("v_max3_f32 v%d, v%d, v%d, v%d" % (V_M, V_M, ML + 6, ML + 8))
    e("v_max3_f32 v%d, v%d, v%d, v%d" % (V_M, V_M, ML + 10, ML + 12))
    e("v_max_f32 v%d, v%d, v%d" % (V_M, V_M, ML + 14))
    for w in range(8):
        e("v_sub_f32 v%d, v%d, v%d" % (ML + 2 * w, ML + 2 * w, V_M))
    for w in range(8):
        e("v_mul_f32 v%d, s%d, v%d" % (ML + 2 * w, S_LOG2E, ML + 2 * w))
    for w in range(8):
        e("v_exp_f32 v%d, v%d" % (ML + 2 * w, ML + 2 * w))
    e("s_nop 0")
    e("v_mul_f32 v%d, v%d, v%d" % (V_L, ML, ML + 1))
    for w in range(1, 8):
        e("v_fmac_f32 v%d, v%d, v%d" % (V_L, ML + 2 * w, ML + 2 * w + 1))
    e("s_waitcnt lgkmcnt(0)")
    VO = V_SC
    e("v_mul_f32 v%d, v%d, v%d" % (VO, ML, OP))
    for w in range(1, 8):
        e("v_fmac_f32 v%d, v%d, v%d" % (VO, ML + 2 * w, OP + w))
    for d in range(8):
        e("v_mov_b32 v%d, 0" % (V_ACC + d))
    e("s_waitcnt vmcnt(0)")
    for r in range(16):
        fma_tile(V_ACC, V_WO + 4 * r, VO, r)
    e("s_lshl_b32 s%d, s%d, 11" % (S_T0, S_W))
    e("v_lshl_add_u32 v5, v%d, 5, s%d" % (V_LANE, S_T0))
    e("ds_write_b128 v5, v[%d:%d] offset:%d" % (V_ACC, V_ACC + 3, LDS_Y))
    e("ds_write_b128 v5, v[%d:%d] offset:%d" % (V_ACC + 4, V_ACC + 7, LDS_Y + 16))
    e("s_waitcnt lgkmcnt(0)")
    e("s_barrier")
    e("v_lshlrev_b32 v5, 2, v0")
    for w in range(8):
        e("ds_read_b32 v%d, v5 offset:%d" % (OP + w, LDS_Y + 2048 * w))
    e("s_waitcnt lgkmcnt(0)")
    for w in range(1, 8):
        e("v_add_f32 v%d, v%d, v%d" % (OP, OP, OP + w))
    e("s_lshl_b32 s%d, s2, 11" % S_T0)
    e("buffer_store_dword v%d, v5, s[%d:%d], s%d offen" % (OP, SRD_WS, SRD_WS + 3, S_T0))
    e("s_cmp_lg_u32 s%d, 0" % S_W)
    e("s_cbranch_scc1 L1_end")
    e("s_lshl_b32 s%d, s2, 3" % S_T0)
    e("s_add_u32 s%d, s%d, %d" % (S_T0, S_T0, 256 * 2048))
    e("v_mov_b32 v5, 0")
    e("s_mov_b64 exec, 1")
    e("buffer_store_dwordx2 v[%d:%d], v5, s[%d:%d], s%d offen" % (V_M, V_L, SRD_WS, SRD_WS + 3, S_T0))
    e("L1_end:")
    e("s_endpgm")

def k2():
    e(".globl combine_kernel")
    e(".p2align 8")
    e(".type combine_kernel,@function")
    e("combine_kernel:")
    e("s_cmp_ge_u32 s2, 32")
    e("s_cbranch_scc1 L2_end")
    e("s_load_dwordx2 s[4:5], s[0:1], 80")
    e("s_load_dwordx2 s[6:7], s[0:1], 96")
    e("s_lshr_b32 s3, s2, 4")
    e("s_and_b32 s16, s2, 15")
    e("v_lshrrev_b32 v1, 3, v0")
    e("v_and_b32 v2, 7, v0")
    e("s_mov_b32 s17, 0x3fb8aa3b")
    e("s_lshl_b32 s18, s3, 5")
    e("v_add_u32 v3, s18, v1")
    e("s_lshl_b32 s19, s16, 7")
    e("v_lshl_add_u32 v4, v2, 4, s19")
    e("v_lshl_add_u32 v4, v3, 11, v4")
    e("v_lshlrev_b32 v5, 3, v3")
    e("s_waitcnt lgkmcnt(0)")
    e("s_mov_b32 s8, s6")
    e("s_mov_b32 s9, s7")
    e("s_mov_b32 s10, %d" % (256 * 2048 + 256 * 8))
    e("s_mov_b32 s11, 0x00020000")
    e("s_mov_b32 s12, s4")
    e("s_mov_b32 s13, s5")
    e("s_mov_b32 s14, 2048")
    e("s_mov_b32 s15, 0x00020000")
    for s in range(4):
        e("s_mov_b32 s%d, %d" % (20 + s, 256 * 2048 + s * 64 * 8))
        e("s_mov_b32 s%d, %d" % (24 + s, s * 64 * 2048))
    for s in range(4):
        e("buffer_load_dwordx2 v[%d:%d], v5, s[8:11], s%d offen" % (8 + 2 * s, 9 + 2 * s, 20 + s))
    for s in range(4):
        e("buffer_load_dwordx4 v[%d:%d], v4, s[8:11], s%d offen" % (16 + 4 * s, 19 + 4 * s, 24 + s))
    e("s_waitcnt vmcnt(4)")
    e("v_max3_f32 v6, v8, v10, v12")
    e("v_max_f32 v6, v6, v14")
    for s in range(4):
        e("v_sub_f32 v%d, v%d, v6" % (8 + 2 * s, 8 + 2 * s))
    for s in range(4):
        e("v_mul_f32 v%d, s17, v%d" % (8 + 2 * s, 8 + 2 * s))
    for s in range(4):
        e("v_exp_f32 v%d, v%d" % (8 + 2 * s, 8 + 2 * s))
    e("s_nop 0")
    e("v_mul_f32 v7, v8, v9")
    for s in range(1, 4):
        e("v_fmac_f32 v7, v%d, v%d" % (8 + 2 * s, 9 + 2 * s))
    e("v_rcp_f32 v7, v7")
    e("s_nop 0")
    for s in range(4):
        e("v_mul_f32 v%d, v%d, v7" % (8 + 2 * s, 8 + 2 * s))
    e("s_waitcnt vmcnt(0)")
    for d in range(4):
        e("v_mul_f32 v%d, v8, v%d" % (32 + d, 16 + d))
    for s in range(1, 4):
        for d in range(4):
            e("v_fmac_f32 v%d, v%d, v%d" % (32 + d, 8 + 2 * s, 16 + 4 * s + d))
    e("s_nop 1")
    for d in range(4):
        e("v_add_f32_dpp v%d, v%d, v%d row_ror:8%s" % (32 + d, 32 + d, 32 + d, DPP))
    e("v_lshrrev_b32 v6, 4, v0")
    e("v_lshlrev_b32 v6, 7, v6")
    e("v_lshl_add_u32 v6, v2, 4, v6")
    e("ds_write_b128 v6, v[32:35]")
    e("s_waitcnt lgkmcnt(0)")
    e("s_barrier")
    e("v_cmp_gt_u32 vcc, 16, v0")
    e("s_and_saveexec_b64 s[28:29], vcc")
    e("s_cbranch_execz L2_end")
    e("v_lshlrev_b32 v6, 3, v0")
    for r in range(16):
        e("ds_read_b64 v[%d:%d], v6 offset:%d" % (8 + 2 * r, 9 + 2 * r, 128 * r))
    e("s_waitcnt lgkmcnt(0)")
    for r in range(1, 16):
        e("v_add_f32 v8, v8, v%d" % (8 + 2 * r))
        e("v_add_f32 v9, v9, v%d" % (9 + 2 * r))
    e("v_cvt_pk_bf16_f32 v8, v8, v9")
    e("s_lshl_b32 s18, s3, 10")
    e("s_lshl_b32 s19, s16, 6")
    e("s_add_u32 s18, s18, s19")
    e("v_lshlrev_b32 v6, 2, v0")
    e("buffer_store_dword v8, v6, s[12:15], s18 offen")
    e("L2_end:")
    e("s_endpgm")

def kd(name, vgpr, sgpr):
    return """.amdhsa_kernel %s
  .amdhsa_next_free_vgpr %d
  .amdhsa_next_free_sgpr %d
  .amdhsa_accum_offset %d
  .amdhsa_group_segment_fixed_size 0
  .amdhsa_kernarg_size 104
  .amdhsa_user_sgpr_count 2
  .amdhsa_user_sgpr_kernarg_segment_ptr 1
  .amdhsa_system_sgpr_workgroup_id_x 1
  .amdhsa_float_denorm_mode_32 3
.end_amdhsa_kernel
""" % (name, vgpr, sgpr, (vgpr + 3) // 4 * 4)

k1()
k2()
txt = HEADER + "\n".join(L) + "\n" + '.section .rodata,"a"\n.p2align 6\n' + kd("attn_part_kernel", 256, 102) + ".p2align 6\n" + kd("combine_kernel", 48, 32)
open(OUT, "w").write(txt)
print("wrote", OUT, len(L), "lines")
```

```python
import sys, os

NAME = "concat_heads__mha_block_cached__gqa_block_cached__decode"
KN = NAME + "_kernel"
OUT = sys.argv[1] if len(sys.argv) > 1 else "cdna_kernels/%s.s" % NAME
NT = " nt"
NTW = " nt"
D = int(os.environ.get("D", "8"))
G = 4
STAMP = os.environ.get("STAMP", "") == "1"
NRED = 32

HEADER = """; Kernarg layout for this problem (104 bytes, ptrs only, base s[0:1]):
; @launch grid=(256,1,1) block=(512,1,1) lds=28672
.amdgcn_target "amdgcn-amd-amdhsa--gfx950"
.text
"""

L = []
def e(s=""):
    L.append("    " + s if s and not s.endswith(":") else s)

DPP = " row_mask:0xf bank_mask:0xf"

S_W = 3; S_H64 = 4; S_SPLIT = 5; S_B = 6; S_H = 7
S_PX = 8; S_PK = 10; S_PV = 12; S_PWQ = 14
S_POUT = 8; S_PDBG = 10
S_PWO = 38
SRD_PF = 40
SRD_WQ = 44
SRD_OUT = 44
SRD_WO = 48
SRD_DBG = 48
SRD_X = 52
SRD_WS = 56
S_KB = 60
S_VB = 62
S_C4 = 64
S_LOG2E = 65; S_SCALE = 66; S_T0 = 67; S_T1 = 68; S_CNT = 69
S_MASK = 70
S_R0 = 16
S_BN = 20
S_C8 = 21; S_C12 = 22; S_T2 = 23

V_LANE = 1
V_OFF16 = 2
V_WQOFF = 3
V_X = 4
V_Q = 8
V_SC = 12
V_SCN = 16
V_P = 20
V_T = 24
V_ACC = 32
V_M = 40
V_L = 41
V_A0 = 42
V_OP = 44
V_RING = 64
V_ML = 96
V_U = 112
V_WQ = 128
V_WO = 192

LDS_Q = 0
LDS_O = 4096
LDS_ML = 8192
LDS_ROLE = 8320
LDS_Y = 8448
LDS_R = 24832

STR = [24, 26, 28, 30, 32, 34, 12, 14]
def stamp(k):
    if STAMP:
        e("s_memrealtime s[%d:%d]" % (STR[k], STR[k] + 1))
        e("s_waitcnt lgkmcnt(0)")

def unpack(dst_lo, dst_hi, src):
    e("v_lshlrev_b32 v%d, 16, v%d" % (dst_lo, src))
    e("v_and_b32 v%d, 0xffff0000, v%d" % (dst_hi, src))

def fma_tile(acc, tile, vsrc, lane):
    for r in range(4):
        unpack(V_T + 2 * r, V_T + 2 * r + 1, tile + r)
    for d in range(8):
        e("v_fmac_f32_dpp v%d, v%d, v%d row_newbcast:%d%s" % (acc + d, vsrc, V_T + d, lane, DPP))

def row_reduce8(acc):
    e("s_nop 1")
    for d in range(4):
        e("v_permlane32_swap_b32 v%d, v%d" % (acc + d, acc + d + 4))
    e("s_nop 1")
    for d in range(4):
        e("v_add_f32 v%d, v%d, v%d" % (acc + d, acc + d, acc + d + 4))
    e("s_nop 1")
    for d in range(2):
        e("v_permlane16_swap_b32 v%d, v%d" % (acc + d, acc + d + 2))
    e("s_nop 1")
    for d in range(2):
        e("v_add_f32 v%d, v%d, v%d" % (acc + d, acc + d, acc + d + 2))

def wave_allreduce(op, v):
    for r in (8, 4, 2, 1):
        e("s_nop 1")
        e("%s_dpp v%d, v%d, v%d row_ror:%d%s" % (op, v, v, v, r, DPP))
    e("s_nop 1")
    for i in range(4):
        e("v_readlane_b32 s%d, v%d, %d" % (S_R0 + i, v, 16 * i))
    e("s_nop 1")
    e("v_mov_b32 v%d, s%d" % (v, S_R0))
    for i in range(1, 4):
        e("%s v%d, s%d, v%d" % (op, v, S_R0 + i, v))

def ld_tile(dst, srd, i, voff, nt=""):
    soff = ["0", "s%d" % S_C4, "s%d" % S_C8, "s%d" % S_C12][i // 4]
    e("buffer_load_dwordx4 v[%d:%d], v%d, s[%d:%d], %s offen offset:%d%s" %
      (dst, dst + 3, voff, srd, srd + 3, soff, (i % 4) * 1024, nt))

def set_block():
    e("s_and_b32 s%d, s%d, 7" % (S_T0, S_BN))
    e("s_lshl_b32 s%d, s%d, 16" % (S_T0, S_T0))
    e("s_cmp_lt_u32 s%d, 8" % S_BN)
    e("s_cselect_b64 s[%d:%d], s[%d:%d], s[%d:%d]" % (SRD_PF, SRD_PF + 1, S_KB, S_KB + 1, S_VB, S_VB + 1))
    e("s_add_u32 s%d, s%d, s%d" % (SRD_PF, SRD_PF, S_T0))
    e("s_addc_u32 s%d, s%d, 0" % (SRD_PF + 1, SRD_PF + 1))
    e("s_cmp_lt_u32 s%d, 16" % S_BN)
    e("s_cselect_b32 s%d, 8192, 0" % (SRD_PF + 2))
    e("s_add_u32 s%d, s%d, 1" % (S_BN, S_BN))

def k_body(first):
    for g in range(4):
        n0 = 4 * g
        w = D - 4
        if first and g >= 1 and D > 4:
            w += 4
        e("s_waitcnt vmcnt(%d)" % w)
        for r in range(4):
            for a in range(4):
                t = V_RING + 4 * ((n0 + a) % D) + r
                if r == 0:
                    e("v_dot2_f32_bf16 v%d, v%d, v%d, 0" % (V_P + a, t, V_Q + r))
                else:
                    e("v_dot2_f32_bf16 v%d, v%d, v%d, v%d" % (V_P + a, t, V_Q + r, V_P + a))
        if first:
            for a in range(4):
                ld_tile(V_WO + 4 * (n0 + a), SRD_WO, n0 + a, V_OFF16, NTW)
        if (n0 + D) % 8 == 0:
            set_block()
        for a in range(4):
            ld_tile(V_RING + 4 * ((n0 + a) % D), SRD_PF, (n0 + a + D) % 8, V_OFF16, NT)
        for ror in (8, 4, 2, 1):
            for a in range(4):
                e("v_add_f32_dpp v%d, v%d, v%d row_ror:%d%s" % (V_P + a, V_P + a, V_P + a, ror, DPP))
        for a in range(4):
            i = n0 + a
            e("v_cndmask_b32 v%d, v%d, v%d, s[%d:%d]" % (V_SCN, V_SCN, V_P + a, S_MASK + 2 * i, S_MASK + 2 * i + 1))
    e("v_mov_b32 v%d, v%d" % (V_SC, V_SC + 1))
    e("v_mov_b32 v%d, v%d" % (V_SC + 1, V_SC + 2))
    e("v_mov_b32 v%d, v%d" % (V_SC + 2, V_SC + 3))
    e("v_cvt_pk_bf16_f32 v%d, v%d, v%d" % (V_T, V_SCN, V_SCN))
    e("v_lshlrev_b32 v%d, 16, v%d" % (V_T, V_T))
    e("v_mul_f32 v%d, s%d, v%d" % (V_T, S_SCALE, V_T))
    e("v_cvt_pk_bf16_f32 v%d, v%d, v%d" % (V_T, V_T, V_T))
    e("v_lshlrev_b32 v%d, 16, v%d" % (V_SC + 3, V_T))

def k1():
    e(".globl %s" % KN)
    e(".p2align 8")
    e(".type %s,@function" % KN)
    e("%s:" % KN)
    e("s_cmp_ge_u32 s2, 256")
    e("s_cbranch_scc1 L_end")
    e("s_load_dwordx16 s[16:31], s[0:1], 0")
    e("s_load_dwordx4 s[32:35], s[0:1], 64")
    e("s_load_dwordx2 s[36:37], s[0:1], 96")
    e("v_lshrrev_b32 v5, 6, v0")
    e("v_and_b32 v%d, 63, v0" % V_LANE)
    e("s_nop 0")
    e("v_readfirstlane_b32 s%d, v5" % S_W)
    e("s_and_b32 s%d, s2, 63" % S_H64)
    e("s_lshr_b32 s%d, s2, 6" % S_SPLIT)
    e("s_lshr_b32 s%d, s%d, 5" % (S_B, S_H64))
    e("s_and_b32 s%d, s%d, 31" % (S_H, S_H64))
    e("v_lshlrev_b32 v%d, 4, v%d" % (V_OFF16, V_LANE))
    e("v_lshrrev_b32 v5, 4, v%d" % V_LANE)
    e("v_and_b32 v6, 15, v%d" % V_LANE)
    e("v_lshlrev_b32 v7, 13, v5")
    e("v_lshl_add_u32 v%d, v6, 4, v7" % V_WQOFF)
    e("v_lshl_add_u32 v7, v6, 2, v5")
    e("v_lshlrev_b32 v7, 1, v7")
    e("s_mov_b32 s%d, 4096" % S_C4)
    e("s_mov_b32 s%d, 0x3fb8aa3b" % S_LOG2E)
    e("s_mov_b32 s%d, 0x3db504f3" % S_SCALE)
    e("s_waitcnt lgkmcnt(0)")
    e("s_cmp_eq_u32 s%d, 0" % S_B)
    e("s_cselect_b64 s[%d:%d], s[16:17], s[26:27]" % (S_PX, S_PX + 1))
    e("s_cselect_b64 s[%d:%d], s[18:19], s[28:29]" % (S_PK, S_PK + 1))
    e("s_cselect_b64 s[%d:%d], s[20:21], s[30:31]" % (S_PV, S_PV + 1))
    e("s_cselect_b64 s[%d:%d], s[22:23], s[32:33]" % (S_PWQ, S_PWQ + 1))
    e("s_cselect_b64 s[%d:%d], s[24:25], s[34:35]" % (S_PWO, S_PWO + 1))
    stamp(0)
    e("s_mov_b32 s%d, 8192" % S_C8)
    e("s_mov_b32 s%d, 12288" % S_C12)
    e("s_mov_b32 s%d, 0" % S_BN)
    e("s_lshl_b32 s%d, s%d, 7" % (S_T0, S_W))
    e("s_add_u32 s%d, s%d, s%d" % (SRD_X, S_PX, S_T0))
    e("s_addc_u32 s%d, s%d, 0" % (SRD_X + 1, S_PX + 1))
    e("s_mov_b32 s%d, 128" % (SRD_X + 2))
    e("s_mov_b32 s%d, 0x00020000" % (SRD_X + 3))
    e("s_lshl_b32 s%d, s%d, 8" % (S_T0, S_H))
    e("s_lshl_b32 s%d, s%d, 19" % (S_T1, S_W))
    e("s_add_u32 s%d, s%d, s%d" % (S_T0, S_T0, S_T1))
    e("s_add_u32 s%d, s%d, s%d" % (SRD_WQ, S_PWQ, S_T0))
    e("s_addc_u32 s%d, s%d, 0" % (SRD_WQ + 1, S_PWQ + 1))
    e("s_mov_b32 s%d, %d" % (SRD_WQ + 2, 63 * 8192 + 256))
    e("s_mov_b32 s%d, 0x00020000" % (SRD_WQ + 3))
    e("buffer_load_ushort v%d, v7, s[%d:%d], 0 offen" % (V_X, SRD_X, SRD_X + 3))
    e("s_mov_b32 s%d, 0" % S_T0)
    for i in range(16):
        e("buffer_load_dwordx4 v[%d:%d], v%d, s[%d:%d], s%d offen%s" %
          (V_WQ + 4 * i, V_WQ + 4 * i + 3, V_WQOFF, SRD_WQ, SRD_WQ + 3, S_T0, NTW))
        if i != 15:
            e("s_add_u32 s%d, s%d, 32768" % (S_T0, S_T0))
    e("s_lshl_b32 s%d, s%d, 21" % (S_T0, S_H))
    e("s_lshl_b32 s%d, s%d, 19" % (S_T1, S_SPLIT))
    e("s_add_u32 s%d, s%d, s%d" % (S_T0, S_T0, S_T1))
    e("s_lshl_b32 s%d, s%d, 13" % (S_T1, S_W))
    e("s_add_u32 s%d, s%d, s%d" % (S_T0, S_T0, S_T1))
    e("s_add_u32 s%d, s%d, s%d" % (S_KB, S_PK, S_T0))
    e("s_addc_u32 s%d, s%d, 0" % (S_KB + 1, S_PK + 1))
    e("s_add_u32 s%d, s%d, s%d" % (S_VB, S_PV, S_T0))
    e("s_addc_u32 s%d, s%d, 0" % (S_VB + 1, S_PV + 1))
    e("s_mov_b32 s%d, 0x00020000" % (SRD_PF + 3))
    e("s_barrier")
    for n in range(D):
        if n % 8 == 0:
            set_block()
        ld_tile(V_RING + 4 * n, SRD_PF, n % 8, V_OFF16, NT)
    e("s_load_dwordx4 s[8:11], s[0:1], 80")
    e("s_lshl_b32 s%d, s%d, 17" % (S_T0, S_H))
    e("s_lshl_b32 s%d, s%d, 14" % (S_T1, S_W))
    e("s_add_u32 s%d, s%d, s%d" % (S_T0, S_T0, S_T1))
    e("s_add_u32 s%d, s%d, s%d" % (SRD_WO, S_PWO, S_T0))
    e("s_addc_u32 s%d, s%d, 0" % (SRD_WO + 1, S_PWO + 1))
    e("s_mov_b32 s%d, 16384" % (SRD_WO + 2))
    e("s_mov_b32 s%d, 0x00020000" % (SRD_WO + 3))
    e("s_mov_b32 s%d, s36" % SRD_WS)
    e("s_mov_b32 s%d, s37" % (SRD_WS + 1))
    e("s_mov_b32 s%d, %d" % (SRD_WS + 2, 256 * 2048 + 256 * 8))
    e("s_mov_b32 s%d, 0x00020000" % (SRD_WS + 3))
    for i in range(16):
        m = (0x00010001 << i) & 0xffffffff
        e("s_mov_b32 s%d, 0x%08x" % (S_MASK + 2 * i, m))
        e("s_mov_b32 s%d, 0x%08x" % (S_MASK + 2 * i + 1, m))
    for d in range(8):
        e("v_mov_b32 v%d, 0" % (V_ACC + d))
    e("s_waitcnt vmcnt(%d)" % (D + 15))
    e("v_lshlrev_b32 v%d, 16, v%d" % (V_X, V_X))
    e("s_nop 1")
    for i in range(16):
        e("s_waitcnt vmcnt(%d)" % (D + 15 - i))
        fma_tile(V_ACC, V_WQ + 4 * i, V_X, i)
    row_reduce8(V_ACC)
    e("v_lshrrev_b32 v5, 4, v%d" % V_LANE)
    e("v_and_b32 v6, 15, v%d" % V_LANE)
    e("v_lshlrev_b32 v7, 3, v5")
    e("v_lshl_add_u32 v7, v6, 5, v7")
    e("s_lshl_b32 s%d, s%d, 9" % (S_T0, S_W))
    e("v_add_u32 v%d, s%d, v7" % (V_A0, S_T0))
    e("ds_write_b64 v%d, v[%d:%d] offset:%d" % (V_A0, V_ACC, V_ACC + 1, LDS_Q))
    e("s_waitcnt lgkmcnt(0)")
    e("s_barrier")
    e("v_lshlrev_b32 v7, 5, v6")
    for w in range(8):
        e("ds_read_b128 v[%d:%d], v7 offset:%d" % (V_WQ + 8 * w, V_WQ + 8 * w + 3, LDS_Q + w * 512))
        e("ds_read_b128 v[%d:%d], v7 offset:%d" % (V_WQ + 8 * w + 4, V_WQ + 8 * w + 7, LDS_Q + w * 512 + 16))
    e("s_waitcnt lgkmcnt(0)")
    for w in range(1, 8):
        for d in range(8):
            e("v_add_f32 v%d, v%d, v%d" % (V_WQ + d, V_WQ + d, V_WQ + 8 * w + d))
    for r in range(4):
        e("v_cvt_pk_bf16_f32 v%d, v%d, v%d" % (V_Q + r, V_WQ + 2 * r, V_WQ + 2 * r + 1))
    stamp(1)
    e("s_nop 1")
    k_body(True)
    e("s_mov_b32 s%d, 0" % S_CNT)
    e("L_kloop:")
    k_body(False)
    e("s_add_u32 s%d, s%d, 1" % (S_CNT, S_CNT))
    e("s_cmp_lt_u32 s%d, 3" % S_CNT)
    e("s_cbranch_scc1 L_kloop")
    stamp(2)
    e("v_max_f32 v%d, v%d, v%d" % (V_M, V_SC, V_SC + 1))
    e("v_max3_f32 v%d, v%d, v%d, v%d" % (V_M, V_M, V_SC + 2, V_SC + 3))
    wave_allreduce("v_max_f32", V_M)
    for t in range(4):
        e("v_sub_f32 v%d, v%d, v%d" % (V_SC + t, V_SC + t, V_M))
    for t in range(4):
        e("v_mul_f32 v%d, s%d, v%d" % (V_SC + t, S_LOG2E, V_SC + t))
    for t in range(4):
        e("v_exp_f32 v%d, v%d" % (V_SC + t, V_SC + t))
    e("s_nop 0")
    e("v_add_f32 v%d, v%d, v%d" % (V_L, V_SC, V_SC + 1))
    e("v_add_f32 v%d, v%d, v%d" % (V_L, V_L, V_SC + 2))
    e("v_add_f32 v%d, v%d, v%d" % (V_L, V_L, V_SC + 3))
    wave_allreduce("v_add_f32", V_L)
    e("s_lshl_b32 s%d, s%d, 3" % (S_T0, S_W))
    e("v_mov_b32 v5, s%d" % S_T0)
    e("s_mov_b64 exec, 1")
    e("ds_write_b64 v5, v[%d:%d] offset:%d" % (V_M, V_L, LDS_ML))
    e("s_mov_b64 exec, -1")
    for d in range(8):
        e("v_mov_b32 v%d, 0" % (V_ACC + d))
    e("s_waitcnt vmcnt(%d)" % D)
    for r in range(16):
        for k in range(4):
            unpack(V_U + 8 * r + 2 * k, V_U + 8 * r + 2 * k + 1, V_WO + 4 * r + k)
    e("s_mov_b32 s%d, 0" % S_CNT)
    e("L_vloop:")
    for g in range(4):
        n0 = 4 * g
        e("s_waitcnt vmcnt(%d)" % (D - 4))
        for a in range(4):
            fma_tile(V_ACC, V_RING + 4 * ((n0 + a) % D), V_SC, n0 + a)
        if (n0 + D) % 8 == 0:
            set_block()
        for a in range(4):
            ld_tile(V_RING + 4 * ((n0 + a) % D), SRD_PF, (n0 + a + D) % 8, V_OFF16, NT)
    e("v_mov_b32 v%d, v%d" % (V_SC, V_SC + 1))
    e("v_mov_b32 v%d, v%d" % (V_SC + 1, V_SC + 2))
    e("v_mov_b32 v%d, v%d" % (V_SC + 2, V_SC + 3))
    e("s_add_u32 s%d, s%d, 1" % (S_CNT, S_CNT))
    e("s_cmp_lt_u32 s%d, 4" % S_CNT)
    e("s_cbranch_scc1 L_vloop")
    stamp(3)
    row_reduce8(V_ACC)
    e("ds_write_b64 v%d, v[%d:%d] offset:%d" % (V_A0, V_ACC, V_ACC + 1, LDS_O))
    e("v_mov_b32 v5, 0")
    e("s_lshl_b32 s%d, s%d, 6" % (S_T0, S_W))
    e("v_lshl_add_u32 v7, v6, 2, s%d" % S_T0)
    e("s_waitcnt lgkmcnt(0)")
    e("s_barrier")
    ML = V_ML
    OP = V_OP
    for i in range(4):
        e("ds_read_b128 v[%d:%d], v5 offset:%d" % (ML + 4 * i, ML + 4 * i + 3, LDS_ML + 16 * i))
    for w in range(8):
        e("ds_read_b32 v%d, v7 offset:%d" % (OP + w, LDS_O + 512 * w))
    e("s_waitcnt lgkmcnt(8)")
    e("v_max3_f32 v%d, v%d, v%d, v%d" % (V_M, ML + 0, ML + 2, ML + 4))
    e("v_max3_f32 v%d, v%d, v%d, v%d" % (V_M, V_M, ML + 6, ML + 8))
    e("v_max3_f32 v%d, v%d, v%d, v%d" % (V_M, V_M, ML + 10, ML + 12))
    e("v_max_f32 v%d, v%d, v%d" % (V_M, V_M, ML + 14))
    for w in range(8):
        e("v_sub_f32 v%d, v%d, v%d" % (ML + 2 * w, ML + 2 * w, V_M))
    for w in range(8):
        e("v_mul_f32 v%d, s%d, v%d" % (ML + 2 * w, S_LOG2E, ML + 2 * w))
    for w in range(8):
        e("v_exp_f32 v%d, v%d" % (ML + 2 * w, ML + 2 * w))
    e("s_waitcnt lgkmcnt(0)")
    VO = V_SC
    e("v_mul_f32 v%d, v%d, v%d" % (VO, ML, OP))
    for w in range(1, 8):
        e("v_fmac_f32 v%d, v%d, v%d" % (VO, ML + 2 * w, OP + w))
    e("v_mul_f32 v%d, v%d, v%d" % (V_L, ML, ML + 1))
    for w in range(1, 8):
        e("v_fmac_f32 v%d, v%d, v%d" % (V_L, ML + 2 * w, ML + 2 * w + 1))
    for r in range(16):
        for d in range(8):
            if r == 0:
                e("v_mul_f32_dpp v%d, v%d, v%d row_newbcast:%d%s" % (V_ACC + d, VO, V_U + 8 * r + d, r, DPP))
            else:
                e("v_fmac_f32_dpp v%d, v%d, v%d row_newbcast:%d%s" % (V_ACC + d, VO, V_U + 8 * r + d, r, DPP))
    e("s_lshl_b32 s%d, s%d, 11" % (S_T0, S_W))
    e("v_lshl_add_u32 v5, v%d, 5, s%d" % (V_LANE, S_T0))
    e("ds_write_b128 v5, v[%d:%d] offset:%d" % (V_ACC, V_ACC + 3, LDS_Y))
    e("ds_write_b128 v5, v[%d:%d] offset:%d" % (V_ACC + 4, V_ACC + 7, LDS_Y + 16))
    e("v_lshlrev_b32 v5, 4, v0")
    e("s_waitcnt vmcnt(0) lgkmcnt(0)")
    e("s_barrier")
    e("s_cmp_ge_u32 s%d, 2" % S_W)
    e("s_cbranch_scc1 L_stored")
    YR = V_RING
    for w in range(8):
        e("ds_read_b128 v[%d:%d], v5 offset:%d" % (YR + 4 * w, YR + 4 * w + 3, LDS_Y + 2048 * w))
    e("s_lshl_b32 s%d, s2, 11" % S_T0)
    e("s_lshl_b32 s%d, s2, 3" % S_T1)
    e("s_add_u32 s%d, s%d, %d" % (S_T1, S_T1, 256 * 2048))
    e("s_waitcnt lgkmcnt(0)")
    for w in range(1, 8):
        for d in range(4):
            e("v_add_f32 v%d, v%d, v%d" % (YR + d, YR + d, YR + 4 * w + d))
    e("buffer_store_dwordx4 v[%d:%d], v5, s[%d:%d], s%d offen sc1" % (YR, YR + 3, SRD_WS, SRD_WS + 3, S_T0))
    e("s_cmp_lg_u32 s%d, 0" % S_W)
    e("s_cbranch_scc1 L_stored")
    e("s_mov_b64 exec, 1")
    e("buffer_store_dwordx2 v[%d:%d], v5, s[%d:%d], s%d offen sc1" % (V_M, V_L, SRD_WS, SRD_WS + 3, S_T1))
    e("s_mov_b64 exec, -1")
    e("L_stored:")
    e("s_mov_b32 s%d, s%d" % (SRD_DBG, S_PDBG))
    e("s_mov_b32 s%d, s%d" % (SRD_DBG + 1, S_PDBG + 1))
    e("s_mov_b32 s%d, 256" % (SRD_DBG + 2))
    e("s_mov_b32 s%d, 0x00020000" % (SRD_DBG + 3))
    e("s_mov_b32 s%d, s%d" % (SRD_OUT, S_POUT))
    e("s_mov_b32 s%d, s%d" % (SRD_OUT + 1, S_POUT + 1))
    e("s_mov_b32 s%d, 2048" % (SRD_OUT + 2))
    e("s_mov_b32 s%d, 0x00020000" % (SRD_OUT + 3))
    e("v_mov_b32 v5, 0")
    e("s_waitcnt vmcnt(0)")
    e("s_barrier")
    stamp(4)
    e("s_cmp_lg_u32 s%d, 0" % S_W)
    e("s_cbranch_scc1 L_wait_role")
    e("v_mov_b32 v7, 1")
    e("s_mov_b64 exec, 1")
    e("buffer_atomic_add v7, v5, s[%d:%d], 0 offen sc0" % (SRD_DBG, SRD_DBG + 3))
    e("s_waitcnt vmcnt(0)")
    e("s_mov_b64 exec, -1")
    e("v_readfirstlane_b32 s%d, v7" % S_T0)
    e("s_nop 3")
    e("s_cmp_lt_u32 s%d, %d" % (S_T0, 256 - NRED))
    e("s_cbranch_scc1 L_publish")
    e("s_cmp_eq_u32 s%d, 255" % S_T0)
    e("s_cbranch_scc1 L_publish")
    e("s_mov_b32 s%d, 0" % S_CNT)
    e("L_poll:")
    e("s_mov_b64 exec, 1")
    e("buffer_load_dword v7, v5, s[%d:%d], 0 offen sc1" % (SRD_DBG, SRD_DBG + 3))
    e("s_waitcnt vmcnt(0)")
    e("s_mov_b64 exec, -1")
    e("v_readfirstlane_b32 s%d, v7" % S_T1)
    e("s_nop 3")
    e("s_cmp_ge_u32 s%d, 256" % S_T1)
    e("s_cbranch_scc1 L_publish")
    e("s_add_u32 s%d, s%d, 1" % (S_CNT, S_CNT))
    e("s_cmp_lt_u32 s%d, 0x100000" % S_CNT)
    e("s_cbranch_scc0 L_publish")
    e("s_sleep 1")
    e("s_branch L_poll")
    e("L_publish:")
    e("v_mov_b32 v7, s%d" % S_T0)
    e("ds_write_b32 v5, v7 offset:%d" % LDS_ROLE)
    e("s_waitcnt lgkmcnt(0)")
    e("L_wait_role:")
    e("s_barrier")
    e("s_cmp_ge_u32 s%d, 4" % S_W)
    e("s_cbranch_scc1 L_end")
    e("ds_read_b32 v7, v5 offset:%d" % LDS_ROLE)
    e("s_waitcnt lgkmcnt(0)")
    e("v_readfirstlane_b32 s%d, v7" % S_T0)
    e("s_nop 3")
    e("s_cmp_lt_u32 s%d, %d" % (S_T0, 256 - NRED))
    e("s_cbranch_scc1 L_end")
    e("s_sub_u32 s%d, s%d, %d" % (S_T0, S_T0, 256 - NRED))
    e("s_lshr_b32 s%d, s%d, 4" % (S_B, S_T0))
    e("s_and_b32 s%d, s%d, 15" % (S_H, S_T0))
    e("v_lshrrev_b32 v1, 3, v0")
    e("v_and_b32 v2, 7, v0")
    e("s_lshl_b32 s%d, s%d, 5" % (S_T0, S_B))
    e("v_add_u32 v3, s%d, v1" % S_T0)
    e("s_lshl_b32 s%d, s%d, 7" % (S_T1, S_H))
    e("v_lshl_add_u32 v4, v2, 4, s%d" % S_T1)
    e("v_lshl_add_u32 v4, v3, 11, v4")
    e("v_lshlrev_b32 v5, 3, v3")
    for s in range(4):
        e("s_mov_b32 s%d, %d" % (16 + s, 256 * 2048 + s * 64 * 8))
        e("s_mov_b32 s%d, %d" % (20 + s, s * 64 * 2048))
    for s in range(4):
        e("buffer_load_dwordx2 v[%d:%d], v5, s[%d:%d], s%d offen sc1" % (8 + 2 * s, 9 + 2 * s, SRD_WS, SRD_WS + 3, 16 + s))
    for s in range(4):
        e("buffer_load_dwordx4 v[%d:%d], v4, s[%d:%d], s%d offen sc1" % (16 + 4 * s, 19 + 4 * s, SRD_WS, SRD_WS + 3, 20 + s))
    e("s_waitcnt vmcnt(4)")
    e("v_max3_f32 v6, v8, v10, v12")
    e("v_max_f32 v6, v6, v14")
    for s in range(4):
        e("v_sub_f32 v%d, v%d, v6" % (8 + 2 * s, 8 + 2 * s))
    for s in range(4):
        e("v_mul_f32 v%d, s%d, v%d" % (8 + 2 * s, S_LOG2E, 8 + 2 * s))
    for s in range(4):
        e("v_exp_f32 v%d, v%d" % (8 + 2 * s, 8 + 2 * s))
    e("s_nop 0")
    e("v_mul_f32 v7, v8, v9")
    for s in range(1, 4):
        e("v_fmac_f32 v7, v%d, v%d" % (8 + 2 * s, 9 + 2 * s))
    e("v_rcp_f32 v7, v7")
    e("s_nop 0")
    for s in range(4):
        e("v_mul_f32 v%d, v%d, v7" % (8 + 2 * s, 8 + 2 * s))
    e("s_waitcnt vmcnt(0)")
    for d in range(4):
        e("v_mul_f32 v%d, v8, v%d" % (32 + d, 16 + d))
    for s in range(1, 4):
        for d in range(4):
            e("v_fmac_f32 v%d, v%d, v%d" % (32 + d, 8 + 2 * s, 16 + 4 * s + d))
    e("s_nop 1")
    for d in range(4):
        e("v_add_f32_dpp v%d, v%d, v%d row_ror:8%s" % (32 + d, 32 + d, 32 + d, DPP))
    e("v_lshrrev_b32 v6, 4, v0")
    e("v_lshlrev_b32 v6, 7, v6")
    e("v_lshl_add_u32 v6, v2, 4, v6")
    e("ds_write_b128 v6, v[32:35] offset:%d" % LDS_R)
    e("s_waitcnt lgkmcnt(0)")
    e("s_barrier")
    e("s_cmp_lg_u32 s%d, 0" % S_W)
    e("s_cbranch_scc1 L_end")
    e("v_lshlrev_b32 v6, 3, v0")
    e("v_lshlrev_b32 v7, 2, v0")
    e("s_mov_b64 exec, 0xffff")
    for r in range(16):
        e("ds_read_b64 v[%d:%d], v6 offset:%d" % (8 + 2 * r, 9 + 2 * r, LDS_R + 128 * r))
    e("s_lshl_b32 s%d, s%d, 10" % (S_T0, S_B))
    e("s_lshl_b32 s%d, s%d, 6" % (S_T1, S_H))
    e("s_add_u32 s%d, s%d, s%d" % (S_T0, S_T0, S_T1))
    e("s_waitcnt lgkmcnt(0)")
    for r in range(1, 16):
        e("v_add_f32 v8, v8, v%d" % (8 + 2 * r))
        e("v_add_f32 v9, v9, v%d" % (9 + 2 * r))
    e("v_cvt_pk_bf16_f32 v8, v8, v9")
    e("buffer_store_dword v8, v7, s[%d:%d], s%d offen" % (SRD_OUT, SRD_OUT + 3, S_T0))
    e("L_end:")
    e("s_endpgm")

def kd(name, vgpr, sgpr):
    return """.amdhsa_kernel %s
  .amdhsa_next_free_vgpr %d
  .amdhsa_next_free_sgpr %d
  .amdhsa_accum_offset %d
  .amdhsa_group_segment_fixed_size 0
  .amdhsa_kernarg_size 104
  .amdhsa_user_sgpr_count 2
  .amdhsa_user_sgpr_kernarg_segment_ptr 1
  .amdhsa_system_sgpr_workgroup_id_x 1
  .amdhsa_float_denorm_mode_32 3
.end_amdhsa_kernel
""" % (name, vgpr, sgpr, (vgpr + 3) // 4 * 4)

k1()
txt = HEADER + "\n".join(L) + "\n" + '.section .rodata,"a"\n.p2align 6\n' + kd(KN, 256, 102)
open(OUT, "w").write(txt)
print("wrote", OUT, len(L), "lines")
```

```python
import sys, os

NAME = "concat_heads__mha_block_cached__gqa_block_cached__decode"
KN = NAME + "_kernel"
OUT = sys.argv[1] if len(sys.argv) > 1 else "cdna_kernels/%s.s" % NAME
NT = " nt"
NTW = " nt"
POL = os.environ.get("POL", "nnnnnn")
def pol(ch): return " nt" if ch == "n" else ""
CUR = {"k": " nt", "v": " nt", "w": " nt", "sfx": ""}
D = int(os.environ.get("D", "8"))
G = 4
STAMP = os.environ.get("STAMP", "") == "1"
NRED = 32

HEADER = """; Kernarg layout for this problem (104 bytes, ptrs only, base s[0:1]):
; @launch grid=(256,1,1) block=(512,1,1) lds=28672
.amdgcn_target "amdgcn-amd-amdhsa--gfx950"
.text
"""

L = []
def e(s=""):
    L.append("    " + s if s and not s.endswith(":") else s)

DPP = " row_mask:0xf bank_mask:0xf"

S_W = 3; S_H64 = 4; S_SPLIT = 5; S_B = 6; S_H = 7
S_PX = 8; S_PK = 10; S_PV = 12; S_PWQ = 14
S_POUT = 8; S_PDBG = 10
S_PWO = 38
SRD_PF = 40
SRD_WQ = 44
SRD_OUT = 44
SRD_WO = 48
SRD_DBG = 48
SRD_X = 52
SRD_WS = 56
S_KB = 60
S_VB = 62
S_C4 = 64
S_LOG2E = 65; S_SCALE = 66; S_T0 = 67; S_T1 = 68; S_CNT = 69
S_MASK = 70
S_R0 = 16
S_BN = 20
S_C8 = 21; S_C12 = 22; S_T2 = 23

V_LANE = 1
V_OFF16 = 2
V_WQOFF = 3
V_X = 4
V_Q = 8
V_SC = 12
V_SCN = 16
V_P = 20
V_T = 24
V_ACC = 32
V_M = 40
V_L = 41
V_A0 = 42
V_OP = 44
V_RING = 64
V_ML = 96
V_U = 112
V_WQ = 128
V_WO = 192

LDS_Q = 0
LDS_O = 4096
LDS_ML = 8192
LDS_ROLE = 8320
LDS_Y = 8448
LDS_R = 24832

STR = [24, 26, 28, 30, 32, 34, 12, 14]
def stamp(k):
    if STAMP:
        e("s_memrealtime s[%d:%d]" % (STR[k], STR[k] + 1))
        e("s_waitcnt lgkmcnt(0)")

def unpack(dst_lo, dst_hi, src):
    e("v_lshlrev_b32 v%d, 16, v%d" % (dst_lo, src))
    e("v_and_b32 v%d, 0xffff0000, v%d" % (dst_hi, src))

def fma_tile(acc, tile, vsrc, lane):
    for r in range(4):
        unpack(V_T + 2 * r, V_T + 2 * r + 1, tile + r)
    for d in range(8):
        e("v_fmac_f32_dpp v%d, v%d, v%d row_newbcast:%d%s" % (acc + d, vsrc, V_T + d, lane, DPP))

def row_reduce8(acc):
    e("s_nop 1")
    for d in range(4):
        e("v_permlane32_swap_b32 v%d, v%d" % (acc + d, acc + d + 4))
    e("s_nop 1")
    for d in range(4):
        e("v_add_f32 v%d, v%d, v%d" % (acc + d, acc + d, acc + d + 4))
    e("s_nop 1")
    for d in range(2):
        e("v_permlane16_swap_b32 v%d, v%d" % (acc + d, acc + d + 2))
    e("s_nop 1")
    for d in range(2):
        e("v_add_f32 v%d, v%d, v%d" % (acc + d, acc + d, acc + d + 2))

def wave_allreduce(op, v):
    for r in (8, 4, 2, 1):
        e("s_nop 1")
        e("%s_dpp v%d, v%d, v%d row_ror:%d%s" % (op, v, v, v, r, DPP))
    e("s_nop 1")
    for i in range(4):
        e("v_readlane_b32 s%d, v%d, %d" % (S_R0 + i, v, 16 * i))
    e("s_nop 1")
    e("v_mov_b32 v%d, s%d" % (v, S_R0))
    for i in range(1, 4):
        e("%s v%d, s%d, v%d" % (op, v, S_R0 + i, v))

def ld_tile(dst, srd, i, voff, nt=""):
    soff = ["0", "s%d" % S_C4, "s%d" % S_C8, "s%d" % S_C12][i // 4]
    e("buffer_load_dwordx4 v[%d:%d], v%d, s[%d:%d], %s offen offset:%d%s" %
      (dst, dst + 3, voff, srd, srd + 3, soff, (i % 4) * 1024, nt))

def set_block():
    e("s_and_b32 s%d, s%d, 7" % (S_T0, S_BN))
    e("s_lshl_b32 s%d, s%d, 16" % (S_T0, S_T0))
    e("s_cmp_lt_u32 s%d, 8" % S_BN)
    e("s_cselect_b64 s[%d:%d], s[%d:%d], s[%d:%d]" % (SRD_PF, SRD_PF + 1, S_KB, S_KB + 1, S_VB, S_VB + 1))
    e("s_add_u32 s%d, s%d, s%d" % (SRD_PF, SRD_PF, S_T0))
    e("s_addc_u32 s%d, s%d, 0" % (SRD_PF + 1, SRD_PF + 1))
    e("s_cmp_lt_u32 s%d, 16" % S_BN)
    e("s_cselect_b32 s%d, 8192, 0" % (SRD_PF + 2))
    e("s_add_u32 s%d, s%d, 1" % (S_BN, S_BN))

def k_body(first):
    for g in range(4):
        n0 = 4 * g
        w = D - 4
        if first and g >= 1 and D > 4:
            w += 4
        e("s_waitcnt vmcnt(%d)" % w)
        for r in range(4):
            for a in range(4):
                t = V_RING + 4 * ((n0 + a) % D) + r
                if r == 0:
                    e("v_dot2_f32_bf16 v%d, v%d, v%d, 0" % (V_P + a, t, V_Q + r))
                else:
                    e("v_dot2_f32_bf16 v%d, v%d, v%d, v%d" % (V_P + a, t, V_Q + r, V_P + a))
        if first:
            for a in range(4):
                ld_tile(V_WO + 4 * (n0 + a), SRD_WO, n0 + a, V_OFF16, NTW)
        if (n0 + D) % 8 == 0:
            set_block()
        for a in range(4):
            ld_tile(V_RING + 4 * ((n0 + a) % D), SRD_PF, (n0 + a + D) % 8, V_OFF16, NT)
        for ror in (8, 4, 2, 1):
            for a in range(4):
                e("v_add_f32_dpp v%d, v%d, v%d row_ror:%d%s" % (V_P + a, V_P + a, V_P + a, ror, DPP))
        for a in range(4):
            i = n0 + a
            e("v_cndmask_b32 v%d, v%d, v%d, s[%d:%d]" % (V_SCN, V_SCN, V_P + a, S_MASK + 2 * i, S_MASK + 2 * i + 1))
    e("v_mov_b32 v%d, v%d" % (V_SC, V_SC + 1))
    e("v_mov_b32 v%d, v%d" % (V_SC + 1, V_SC + 2))
    e("v_mov_b32 v%d, v%d" % (V_SC + 2, V_SC + 3))
    e("v_cvt_pk_bf16_f32 v%d, v%d, v%d" % (V_T, V_SCN, V_SCN))
    e("v_lshlrev_b32 v%d, 16, v%d" % (V_T, V_T))
    e("v_mul_f32 v%d, s%d, v%d" % (V_T, S_SCALE, V_T))
    e("v_cvt_pk_bf16_f32 v%d, v%d, v%d" % (V_T, V_T, V_T))
    e("v_lshlrev_b32 v%d, 16, v%d" % (V_SC + 3, V_T))

def k1():
    e(".globl %s" % KN)
    e(".p2align 8")
    e(".type %s,@function" % KN)
    e("%s:" % KN)
    e("s_cmp_ge_u32 s2, 256")
    e("s_cbranch_scc1 L_end")
    e("s_load_dwordx16 s[16:31], s[0:1], 0")
    e("s_load_dwordx4 s[32:35], s[0:1], 64")
    e("s_load_dwordx2 s[36:37], s[0:1], 96")
    e("v_lshrrev_b32 v5, 6, v0")
    e("v_and_b32 v%d, 63, v0" % V_LANE)
    e("s_nop 0")
    e("v_readfirstlane_b32 s%d, v5" % S_W)
    e("s_and_b32 s%d, s2, 63" % S_H64)
    e("s_lshr_b32 s%d, s2, 6" % S_SPLIT)
    e("s_lshr_b32 s%d, s%d, 5" % (S_B, S_H64))
    e("s_and_b32 s%d, s%d, 31" % (S_H, S_H64))
    e("v_lshlrev_b32 v%d, 4, v%d" % (V_OFF16, V_LANE))
    e("v_lshrrev_b32 v5, 4, v%d" % V_LANE)
    e("v_and_b32 v6, 15, v%d" % V_LANE)
    e("v_lshlrev_b32 v7, 13, v5")
    e("v_lshl_add_u32 v%d, v6, 4, v7" % V_WQOFF)
    e("v_lshl_add_u32 v7, v6, 2, v5")
    e("v_lshlrev_b32 v7, 1, v7")
    e("s_mov_b32 s%d, 4096" % S_C4)
    e("s_mov_b32 s%d, 0x3fb8aa3b" % S_LOG2E)
    e("s_mov_b32 s%d, 0x3db504f3" % S_SCALE)
    e("s_waitcnt lgkmcnt(0)")
    e("s_cmp_eq_u32 s%d, 0" % S_B)
    e("s_cselect_b64 s[%d:%d], s[16:17], s[26:27]" % (S_PX, S_PX + 1))
    e("s_cselect_b64 s[%d:%d], s[18:19], s[28:29]" % (S_PK, S_PK + 1))
    e("s_cselect_b64 s[%d:%d], s[20:21], s[30:31]" % (S_PV, S_PV + 1))
    e("s_cselect_b64 s[%d:%d], s[22:23], s[32:33]" % (S_PWQ, S_PWQ + 1))
    e("s_cselect_b64 s[%d:%d], s[24:25], s[34:35]" % (S_PWO, S_PWO + 1))
    def main_body(sfx, pk, pv, pw):
        global NT, NTW
        NTW = pw
        NT = pk
        stamp(0)
        e("s_mov_b32 s%d, 8192" % S_C8)
        e("s_mov_b32 s%d, 12288" % S_C12)
        e("s_mov_b32 s%d, 0" % S_BN)
        e("s_lshl_b32 s%d, s%d, 7" % (S_T0, S_W))
        e("s_add_u32 s%d, s%d, s%d" % (SRD_X, S_PX, S_T0))
        e("s_addc_u32 s%d, s%d, 0" % (SRD_X + 1, S_PX + 1))
        e("s_mov_b32 s%d, 128" % (SRD_X + 2))
        e("s_mov_b32 s%d, 0x00020000" % (SRD_X + 3))
        e("s_lshl_b32 s%d, s%d, 8" % (S_T0, S_H))
        e("s_lshl_b32 s%d, s%d, 19" % (S_T1, S_W))
        e("s_add_u32 s%d, s%d, s%d" % (S_T0, S_T0, S_T1))
        e("s_add_u32 s%d, s%d, s%d" % (SRD_WQ, S_PWQ, S_T0))
        e("s_addc_u32 s%d, s%d, 0" % (SRD_WQ + 1, S_PWQ + 1))
        e("s_mov_b32 s%d, %d" % (SRD_WQ + 2, 63 * 8192 + 256))
        e("s_mov_b32 s%d, 0x00020000" % (SRD_WQ + 3))
        e("buffer_load_ushort v%d, v7, s[%d:%d], 0 offen" % (V_X, SRD_X, SRD_X + 3))
        e("s_mov_b32 s%d, 0" % S_T0)
        for i in range(16):
            e("buffer_load_dwordx4 v[%d:%d], v%d, s[%d:%d], s%d offen%s" %
              (V_WQ + 4 * i, V_WQ + 4 * i + 3, V_WQOFF, SRD_WQ, SRD_WQ + 3, S_T0, NTW))
            if i != 15:
                e("s_add_u32 s%d, s%d, 32768" % (S_T0, S_T0))
        e("s_lshl_b32 s%d, s%d, 21" % (S_T0, S_H))
        e("s_lshl_b32 s%d, s%d, 19" % (S_T1, S_SPLIT))
        e("s_add_u32 s%d, s%d, s%d" % (S_T0, S_T0, S_T1))
        e("s_lshl_b32 s%d, s%d, 13" % (S_T1, S_W))
        e("s_add_u32 s%d, s%d, s%d" % (S_T0, S_T0, S_T1))
        e("s_add_u32 s%d, s%d, s%d" % (S_KB, S_PK, S_T0))
        e("s_addc_u32 s%d, s%d, 0" % (S_KB + 1, S_PK + 1))
        e("s_add_u32 s%d, s%d, s%d" % (S_VB, S_PV, S_T0))
        e("s_addc_u32 s%d, s%d, 0" % (S_VB + 1, S_PV + 1))
        e("s_mov_b32 s%d, 0x00020000" % (SRD_PF + 3))
        e("s_barrier")
        for n in range(D):
            if n % 8 == 0:
                set_block()
            ld_tile(V_RING + 4 * n, SRD_PF, n % 8, V_OFF16, NT)
        e("s_load_dwordx4 s[8:11], s[0:1], 80")
        e("s_lshl_b32 s%d, s%d, 17" % (S_T0, S_H))
        e("s_lshl_b32 s%d, s%d, 14" % (S_T1, S_W))
        e("s_add_u32 s%d, s%d, s%d" % (S_T0, S_T0, S_T1))
        e("s_add_u32 s%d, s%d, s%d" % (SRD_WO, S_PWO, S_T0))
        e("s_addc_u32 s%d, s%d, 0" % (SRD_WO + 1, S_PWO + 1))
        e("s_mov_b32 s%d, 16384" % (SRD_WO + 2))
        e("s_mov_b32 s%d, 0x00020000" % (SRD_WO + 3))
        e("s_mov_b32 s%d, s36" % SRD_WS)
        e("s_mov_b32 s%d, s37" % (SRD_WS + 1))
        e("s_mov_b32 s%d, %d" % (SRD_WS + 2, 256 * 2048 + 256 * 8))
        e("s_mov_b32 s%d, 0x00020000" % (SRD_WS + 3))
        for i in range(16):
            m = (0x00010001 << i) & 0xffffffff
            e("s_mov_b32 s%d, 0x%08x" % (S_MASK + 2 * i, m))
            e("s_mov_b32 s%d, 0x%08x" % (S_MASK + 2 * i + 1, m))
        for d in range(8):
            e("v_mov_b32 v%d, 0" % (V_ACC + d))
        e("s_waitcnt vmcnt(%d)" % (D + 15))
        e("v_lshlrev_b32 v%d, 16, v%d" % (V_X, V_X))
        e("s_nop 1")
        for i in range(16):
            e("s_waitcnt vmcnt(%d)" % (D + 15 - i))
            fma_tile(V_ACC, V_WQ + 4 * i, V_X, i)
        row_reduce8(V_ACC)
        e("v_lshrrev_b32 v5, 4, v%d" % V_LANE)
        e("v_and_b32 v6, 15, v%d" % V_LANE)
        e("v_lshlrev_b32 v7, 3, v5")
        e("v_lshl_add_u32 v7, v6, 5, v7")
        e("s_lshl_b32 s%d, s%d, 9" % (S_T0, S_W))
        e("v_add_u32 v%d, s%d, v7" % (V_A0, S_T0))
        e("ds_write_b64 v%d, v[%d:%d] offset:%d" % (V_A0, V_ACC, V_ACC + 1, LDS_Q))
        e("s_waitcnt lgkmcnt(0)")
        e("s_barrier")
        e("v_lshlrev_b32 v7, 5, v6")
        for w in range(8):
            e("ds_read_b128 v[%d:%d], v7 offset:%d" % (V_WQ + 8 * w, V_WQ + 8 * w + 3, LDS_Q + w * 512))
            e("ds_read_b128 v[%d:%d], v7 offset:%d" % (V_WQ + 8 * w + 4, V_WQ + 8 * w + 7, LDS_Q + w * 512 + 16))
        e("s_waitcnt lgkmcnt(0)")
        for w in range(1, 8):
            for d in range(8):
                e("v_add_f32 v%d, v%d, v%d" % (V_WQ + d, V_WQ + d, V_WQ + 8 * w + d))
        for r in range(4):
            e("v_cvt_pk_bf16_f32 v%d, v%d, v%d" % (V_Q + r, V_WQ + 2 * r, V_WQ + 2 * r + 1))
        stamp(1)
        e("s_nop 1")
        k_body(True)
        e("s_mov_b32 s%d, 0" % S_CNT)
        e("L_kloop%s:" % sfx)
        k_body(False)
        e("s_add_u32 s%d, s%d, 1" % (S_CNT, S_CNT))
        e("s_cmp_lt_u32 s%d, 3" % S_CNT)
        e("s_cbranch_scc1 L_kloop%s" % sfx)
        stamp(2)
        e("v_max_f32 v%d, v%d, v%d" % (V_M, V_SC, V_SC + 1))
        e("v_max3_f32 v%d, v%d, v%d, v%d" % (V_M, V_M, V_SC + 2, V_SC + 3))
        wave_allreduce("v_max_f32", V_M)
        for t in range(4):
            e("v_sub_f32 v%d, v%d, v%d" % (V_SC + t, V_SC + t, V_M))
        for t in range(4):
            e("v_mul_f32 v%d, s%d, v%d" % (V_SC + t, S_LOG2E, V_SC + t))
        for t in range(4):
            e("v_exp_f32 v%d, v%d" % (V_SC + t, V_SC + t))
        e("s_nop 0")
        e("v_add_f32 v%d, v%d, v%d" % (V_L, V_SC, V_SC + 1))
        e("v_add_f32 v%d, v%d, v%d" % (V_L, V_L, V_SC + 2))
        e("v_add_f32 v%d, v%d, v%d" % (V_L, V_L, V_SC + 3))
        wave_allreduce("v_add_f32", V_L)
        e("s_lshl_b32 s%d, s%d, 3" % (S_T0, S_W))
        e("v_mov_b32 v5, s%d" % S_T0)
        e("s_mov_b64 exec, 1")
        e("ds_write_b64 v5, v[%d:%d] offset:%d" % (V_M, V_L, LDS_ML))
        e("s_mov_b64 exec, -1")
        for d in range(8):
            e("v_mov_b32 v%d, 0" % (V_ACC + d))
        e("s_waitcnt vmcnt(%d)" % D)
        for r in range(16):
            for k in range(4):
                unpack(V_U + 8 * r + 2 * k, V_U + 8 * r + 2 * k + 1, V_WO + 4 * r + k)
        e("s_mov_b32 s%d, 0" % S_CNT)
        NT = pv
        e("L_vloop%s:" % sfx)
        for g in range(4):
            n0 = 4 * g
            e("s_waitcnt vmcnt(%d)" % (D - 4))
            for a in range(4):
                fma_tile(V_ACC, V_RING + 4 * ((n0 + a) % D), V_SC, n0 + a)
            if (n0 + D) % 8 == 0:
                set_block()
            for a in range(4):
                ld_tile(V_RING + 4 * ((n0 + a) % D), SRD_PF, (n0 + a + D) % 8, V_OFF16, NT)
        e("v_mov_b32 v%d, v%d" % (V_SC, V_SC + 1))
        e("v_mov_b32 v%d, v%d" % (V_SC + 1, V_SC + 2))
        e("v_mov_b32 v%d, v%d" % (V_SC + 2, V_SC + 3))
        e("s_add_u32 s%d, s%d, 1" % (S_CNT, S_CNT))
        e("s_cmp_lt_u32 s%d, 4" % S_CNT)
        e("s_cbranch_scc1 L_vloop%s" % sfx)
    if POL[0] == POL[2] and POL[1] == POL[3] and POL[4] == POL[5]:
        main_body("", pol(POL[0]), pol(POL[1]), pol(POL[4]))
    else:
        e("s_cmp_eq_u32 s%d, 0" % S_B)
        e("s_cbranch_scc0 L_bodyB")
        main_body("A", pol(POL[0]), pol(POL[1]), pol(POL[4]))
        e("s_branch L_epi")
        e("L_bodyB:")
        main_body("B", pol(POL[2]), pol(POL[3]), pol(POL[5]))
        e("L_epi:")
    stamp(3)
    row_reduce8(V_ACC)
    e("ds_write_b64 v%d, v[%d:%d] offset:%d" % (V_A0, V_ACC, V_ACC + 1, LDS_O))
    e("v_mov_b32 v5, 0")
    e("s_lshl_b32 s%d, s%d, 6" % (S_T0, S_W))
    e("v_lshl_add_u32 v7, v6, 2, s%d" % S_T0)
    e("s_waitcnt lgkmcnt(0)")
    e("s_barrier")
    ML = V_ML
    OP = V_OP
    for i in range(4):
        e("ds_read_b128 v[%d:%d], v5 offset:%d" % (ML + 4 * i, ML + 4 * i + 3, LDS_ML + 16 * i))
    for w in range(8):
        e("ds_read_b32 v%d, v7 offset:%d" % (OP + w, LDS_O + 512 * w))
    e("s_waitcnt lgkmcnt(8)")
    e("v_max3_f32 v%d, v%d, v%d, v%d" % (V_M, ML + 0, ML + 2, ML + 4))
    e("v_max3_f32 v%d, v%d, v%d, v%d" % (V_M, V_M, ML + 6, ML + 8))
    e("v_max3_f32 v%d, v%d, v%d, v%d" % (V_M, V_M, ML + 10, ML + 12))
    e("v_max_f32 v%d, v%d, v%d" % (V_M, V_M, ML + 14))
    for w in range(8):
        e("v_sub_f32 v%d, v%d, v%d" % (ML + 2 * w, ML + 2 * w, V_M))
    for w in range(8):
        e("v_mul_f32 v%d, s%d, v%d" % (ML + 2 * w, S_LOG2E, ML + 2 * w))
    for w in range(8):
        e("v_exp_f32 v%d, v%d" % (ML + 2 * w, ML + 2 * w))
    e("s_waitcnt lgkmcnt(0)")
    VO = V_SC
    e("v_mul_f32 v%d, v%d, v%d" % (VO, ML, OP))
    for w in range(1, 8):
        e("v_fmac_f32 v%d, v%d, v%d" % (VO, ML + 2 * w, OP + w))
    e("v_mul_f32 v%d, v%d, v%d" % (V_L, ML, ML + 1))
    for w in range(1, 8):
        e("v_fmac_f32 v%d, v%d, v%d" % (V_L, ML + 2 * w, ML + 2 * w + 1))
    for r in range(16):
        for d in range(8):
            if r == 0:
                e("v_mul_f32_dpp v%d, v%d, v%d row_newbcast:%d%s" % (V_ACC + d, VO, V_U + 8 * r + d, r, DPP))
            else:
                e("v_fmac_f32_dpp v%d, v%d, v%d row_newbcast:%d%s" % (V_ACC + d, VO, V_U + 8 * r + d, r, DPP))
    e("s_lshl_b32 s%d, s%d, 11" % (S_T0, S_W))
    e("v_lshl_add_u32 v5, v%d, 5, s%d" % (V_LANE, S_T0))
    e("ds_write_b128 v5, v[%d:%d] offset:%d" % (V_ACC, V_ACC + 3, LDS_Y))
    e("ds_write_b128 v5, v[%d:%d] offset:%d" % (V_ACC + 4, V_ACC + 7, LDS_Y + 16))
    e("v_lshlrev_b32 v5, 4, v0")
    e("s_waitcnt vmcnt(0) lgkmcnt(0)")
    e("s_barrier")
    e("s_cmp_ge_u32 s%d, 2" % S_W)
    e("s_cbranch_scc1 L_stored")
    YR = V_RING
    for w in range(8):
        e("ds_read_b128 v[%d:%d], v5 offset:%d" % (YR + 4 * w, YR + 4 * w + 3, LDS_Y + 2048 * w))
    e("s_lshl_b32 s%d, s2, 11" % S_T0)
    e("s_lshl_b32 s%d, s2, 3" % S_T1)
    e("s_add_u32 s%d, s%d, %d" % (S_T1, S_T1, 256 * 2048))
    e("s_waitcnt lgkmcnt(0)")
    for w in range(1, 8):
        for d in range(4):
            e("v_add_f32 v%d, v%d, v%d" % (YR + d, YR + d, YR + 4 * w + d))
    e("buffer_store_dwordx4 v[%d:%d], v5, s[%d:%d], s%d offen sc1" % (YR, YR + 3, SRD_WS, SRD_WS + 3, S_T0))
    e("s_cmp_lg_u32 s%d, 0" % S_W)
    e("s_cbranch_scc1 L_stored")
    e("s_mov_b64 exec, 1")
    e("buffer_store_dwordx2 v[%d:%d], v5, s[%d:%d], s%d offen sc1" % (V_M, V_L, SRD_WS, SRD_WS + 3, S_T1))
    e("s_mov_b64 exec, -1")
    e("L_stored:")
    e("s_mov_b32 s%d, s%d" % (SRD_DBG, S_PDBG))
    e("s_mov_b32 s%d, s%d" % (SRD_DBG + 1, S_PDBG + 1))
    e("s_mov_b32 s%d, 256" % (SRD_DBG + 2))
    e("s_mov_b32 s%d, 0x00020000" % (SRD_DBG + 3))
    e("s_mov_b32 s%d, s%d" % (SRD_OUT, S_POUT))
    e("s_mov_b32 s%d, s%d" % (SRD_OUT + 1, S_POUT + 1))
    e("s_mov_b32 s%d, 2048" % (SRD_OUT + 2))
    e("s_mov_b32 s%d, 0x00020000" % (SRD_OUT + 3))
    e("v_mov_b32 v5, 0")
    e("s_waitcnt vmcnt(0)")
    e("s_barrier")
    stamp(4)
    e("s_cmp_lg_u32 s%d, 0" % S_W)
    e("s_cbranch_scc1 L_wait_role")
    if STAMP:
        e("s_mov_b32 s%d, %d" % (SRD_WS + 2, 2 << 20))
        e("s_lshl_b32 s%d, s2, 6" % S_T0)
        e("s_add_u32 s%d, s%d, %d" % (S_T0, S_T0, 1 << 20))
        e("s_mov_b64 exec, 1")
        for k in range(8):
            e("v_mov_b32 v8, s%d" % (STR[k]))
            e("v_mov_b32 v9, s%d" % (STR[k] + 1))
            e("buffer_store_dwordx2 v[8:9], v5, s[%d:%d], s%d offen offset:%d" % (SRD_WS, SRD_WS + 3, S_T0, 8 * k))
            e("s_nop 2")
        e("s_mov_b64 exec, -1")
    e("v_mov_b32 v7, 1")
    e("s_mov_b64 exec, 1")
    e("buffer_atomic_add v7, v5, s[%d:%d], 0 offen sc0" % (SRD_DBG, SRD_DBG + 3))
    e("s_waitcnt vmcnt(0)")
    e("s_mov_b64 exec, -1")
    e("v_readfirstlane_b32 s%d, v7" % S_T0)
    e("s_nop 3")
    e("s_cmp_lt_u32 s%d, %d" % (S_T0, 256 - NRED))
    e("s_cbranch_scc1 L_publish")
    e("s_cmp_eq_u32 s%d, 255" % S_T0)
    e("s_cbranch_scc1 L_publish")
    e("s_mov_b32 s%d, 0" % S_CNT)
    e("L_poll:")
    e("s_mov_b64 exec, 1")
    e("buffer_load_dword v7, v5, s[%d:%d], 0 offen sc1" % (SRD_DBG, SRD_DBG + 3))
    e("s_waitcnt vmcnt(0)")
    e("s_mov_b64 exec, -1")
    e("v_readfirstlane_b32 s%d, v7" % S_T1)
    e("s_nop 3")
    e("s_cmp_ge_u32 s%d, 256" % S_T1)
    e("s_cbranch_scc1 L_publish")
    e("s_add_u32 s%d, s%d, 1" % (S_CNT, S_CNT))
    e("s_cmp_lt_u32 s%d, 0x100000" % S_CNT)
    e("s_cbranch_scc0 L_publish")
    e("s_sleep 1")
    e("s_branch L_poll")
    e("L_publish:")
    e("v_mov_b32 v7, s%d" % S_T0)
    e("ds_write_b32 v5, v7 offset:%d" % LDS_ROLE)
    e("s_waitcnt lgkmcnt(0)")
    e("L_wait_role:")
    e("s_barrier")
    e("s_cmp_ge_u32 s%d, 4" % S_W)
    e("s_cbranch_scc1 L_end")
    e("ds_read_b32 v7, v5 offset:%d" % LDS_ROLE)
    e("s_waitcnt lgkmcnt(0)")
    e("v_readfirstlane_b32 s%d, v7" % S_T0)
    e("s_nop 3")
    e("s_cmp_lt_u32 s%d, %d" % (S_T0, 256 - NRED))
    e("s_cbranch_scc1 L_end")
    e("s_sub_u32 s%d, s%d, %d" % (S_T0, S_T0, 256 - NRED))
    e("s_lshr_b32 s%d, s%d, 4" % (S_B, S_T0))
    e("s_and_b32 s%d, s%d, 15" % (S_H, S_T0))
    e("v_lshrrev_b32 v1, 3, v0")
    e("v_and_b32 v2, 7, v0")
    e("s_lshl_b32 s%d, s%d, 5" % (S_T0, S_B))
    e("v_add_u32 v3, s%d, v1" % S_T0)
    e("s_lshl_b32 s%d, s%d, 7" % (S_T1, S_H))
    e("v_lshl_add_u32 v4, v2, 4, s%d" % S_T1)
    e("v_lshl_add_u32 v4, v3, 11, v4")
    e("v_lshlrev_b32 v5, 3, v3")
    for s in range(4):
        e("s_mov_b32 s%d, %d" % (16 + s, 256 * 2048 + s * 64 * 8))
        e("s_mov_b32 s%d, %d" % (20 + s, s * 64 * 2048))
    for s in range(4):
        e("buffer_load_dwordx2 v[%d:%d], v5, s[%d:%d], s%d offen sc1" % (8 + 2 * s, 9 + 2 * s, SRD_WS, SRD_WS + 3, 16 + s))
    for s in range(4):
        e("buffer_load_dwordx4 v[%d:%d], v4, s[%d:%d], s%d offen sc1" % (16 + 4 * s, 19 + 4 * s, SRD_WS, SRD_WS + 3, 20 + s))
    e("s_waitcnt vmcnt(4)")
    e("v_max3_f32 v6, v8, v10, v12")
    e("v_max_f32 v6, v6, v14")
    for s in range(4):
        e("v_sub_f32 v%d, v%d, v6" % (8 + 2 * s, 8 + 2 * s))
    for s in range(4):
        e("v_mul_f32 v%d, s%d, v%d" % (8 + 2 * s, S_LOG2E, 8 + 2 * s))
    for s in range(4):
        e("v_exp_f32 v%d, v%d" % (8 + 2 * s, 8 + 2 * s))
    e("s_nop 0")
    e("v_mul_f32 v7, v8, v9")
    for s in range(1, 4):
        e("v_fmac_f32 v7, v%d, v%d" % (8 + 2 * s, 9 + 2 * s))
    e("v_rcp_f32 v7, v7")
    e("s_nop 0")
    for s in range(4):
        e("v_mul_f32 v%d, v%d, v7" % (8 + 2 * s, 8 + 2 * s))
    e("s_waitcnt vmcnt(0)")
    for d in range(4):
        e("v_mul_f32 v%d, v8, v%d" % (32 + d, 16 + d))
    for s in range(1, 4):
        for d in range(4):
            e("v_fmac_f32 v%d, v%d, v%d" % (32 + d, 8 + 2 * s, 16 + 4 * s + d))
    e("s_nop 1")
    for d in range(4):
        e("v_add_f32_dpp v%d, v%d, v%d row_ror:8%s" % (32 + d, 32 + d, 32 + d, DPP))
    e("v_lshrrev_b32 v6, 4, v0")
    e("v_lshlrev_b32 v6, 7, v6")
    e("v_lshl_add_u32 v6, v2, 4, v6")
    e("ds_write_b128 v6, v[32:35] offset:%d" % LDS_R)
    e("s_waitcnt lgkmcnt(0)")
    e("s_barrier")
    e("s_cmp_lg_u32 s%d, 0" % S_W)
    e("s_cbranch_scc1 L_end")
    e("v_lshlrev_b32 v6, 3, v0")
    e("v_lshlrev_b32 v7, 2, v0")
    e("s_mov_b64 exec, 0xffff")
    for r in range(16):
        e("ds_read_b64 v[%d:%d], v6 offset:%d" % (8 + 2 * r, 9 + 2 * r, LDS_R + 128 * r))
    e("s_lshl_b32 s%d, s%d, 10" % (S_T0, S_B))
    e("s_lshl_b32 s%d, s%d, 6" % (S_T1, S_H))
    e("s_add_u32 s%d, s%d, s%d" % (S_T0, S_T0, S_T1))
    e("s_waitcnt lgkmcnt(0)")
    for r in range(1, 16):
        e("v_add_f32 v8, v8, v%d" % (8 + 2 * r))
        e("v_add_f32 v9, v9, v%d" % (9 + 2 * r))
    e("v_cvt_pk_bf16_f32 v8, v8, v9")
    e("buffer_store_dword v8, v7, s[%d:%d], s%d offen" % (SRD_OUT, SRD_OUT + 3, S_T0))
    e("L_end:")
    e("s_endpgm")

def kd(name, vgpr, sgpr):
    return """.amdhsa_kernel %s
  .amdhsa_next_free_vgpr %d
  .amdhsa_next_free_sgpr %d
  .amdhsa_accum_offset %d
  .amdhsa_group_segment_fixed_size 0
  .amdhsa_kernarg_size 104
  .amdhsa_user_sgpr_count 2
  .amdhsa_user_sgpr_kernarg_segment_ptr 1
  .amdhsa_system_sgpr_workgroup_id_x 1
  .amdhsa_float_denorm_mode_32 3
.end_amdhsa_kernel
""" % (name, vgpr, sgpr, (vgpr + 3) // 4 * 4)

k1()
txt = HEADER + "\n".join(L) + "\n" + '.section .rodata,"a"\n.p2align 6\n' + kd(KN, 256, 102)
open(OUT, "w").write(txt)
print("wrote", OUT, len(L), "lines")
```

```python
import sys, os

NAME = "concat_heads__mha_block_cached__gqa_block_cached__decode"
KN = NAME + "_kernel"
OUT = sys.argv[1] if len(sys.argv) > 1 else "cdna_kernels/%s.s" % NAME
NT = " nt"
NTW = " nt"
D = int(os.environ.get("D", "8"))
G = int(os.environ.get("G", "4"))
WT = int(os.environ.get("W", str(D - G)))
assert WT <= D - G
STAMP = os.environ.get("STAMP", "") == "1"
NRED = 32

HEADER = """; Kernarg layout for this problem (104 bytes, ptrs only, base s[0:1]):
; @launch grid=(256,1,1) block=(512,1,1) lds=28672
.amdgcn_target "amdgcn-amd-amdhsa--gfx950"
.text
"""

L = []
def e(s=""):
    L.append("    " + s if s and not s.endswith(":") else s)

DPP = " row_mask:0xf bank_mask:0xf"

S_W = 3; S_H64 = 4; S_SPLIT = 5; S_B = 6; S_H = 7
S_PX = 8; S_PK = 10; S_PV = 12; S_PWQ = 14
S_POUT = 8; S_PDBG = 10
S_PWO = 38
SRD_PF = 40
SRD_WQ = 44
SRD_OUT = 44
SRD_WO = 48
SRD_DBG = 48
SRD_X = 52
SRD_WS = 56
S_KB = 60
S_VB = 62
S_C4 = 64
S_LOG2E = 65; S_SCALE = 66; S_T0 = 67; S_T1 = 68; S_CNT = 69
S_MASK = 70
S_R0 = 16
S_BN = 20
S_C8 = 21; S_C12 = 22; S_T2 = 23

V_LANE = 1
V_OFF16 = 2
V_WQOFF = 3
V_X = 4
V_Q = 8
V_SC = 12
V_SCN = 16
V_P = 20
V_T = 24
V_ACC = 32
V_M = 40
V_L = 41
V_A0 = 42
V_OP = 44
V_RING = 64
NOUNP = D > 8
V_ML = 128 if NOUNP else 96
V_U = 112
V_WQ = 128
V_WO = 192

LDS_Q = 0
LDS_O = 4096
LDS_ML = 8192
LDS_ROLE = 8320
LDS_Y = 8448
LDS_R = 24832

STR = [24, 26, 28, 30, 32, 34, 12, 14]
def stamp(k):
    if STAMP:
        e("s_memrealtime s[%d:%d]" % (STR[k], STR[k] + 1))
        e("s_waitcnt lgkmcnt(0)")

def unpack(dst_lo, dst_hi, src):
    e("v_lshlrev_b32 v%d, 16, v%d" % (dst_lo, src))
    e("v_and_b32 v%d, 0xffff0000, v%d" % (dst_hi, src))

def fma_tile(acc, tile, vsrc, lane):
    for r in range(4):
        unpack(V_T + 2 * r, V_T + 2 * r + 1, tile + r)
    for d in range(8):
        e("v_fmac_f32_dpp v%d, v%d, v%d row_newbcast:%d%s" % (acc + d, vsrc, V_T + d, lane, DPP))

def row_reduce8(acc):
    e("s_nop 1")
    for d in range(4):
        e("v_permlane32_swap_b32 v%d, v%d" % (acc + d, acc + d + 4))
    e("s_nop 1")
    for d in range(4):
        e("v_add_f32 v%d, v%d, v%d" % (acc + d, acc + d, acc + d + 4))
    e("s_nop 1")
    for d in range(2):
        e("v_permlane16_swap_b32 v%d, v%d" % (acc + d, acc + d + 2))
    e("s_nop 1")
    for d in range(2):
        e("v_add_f32 v%d, v%d, v%d" % (acc + d, acc + d, acc + d + 2))

def wave_allreduce(op, v):
    for r in (8, 4, 2, 1):
        e("s_nop 1")
        e("%s_dpp v%d, v%d, v%d row_ror:%d%s" % (op, v, v, v, r, DPP))
    e("s_nop 1")
    for i in range(4):
        e("v_readlane_b32 s%d, v%d, %d" % (S_R0 + i, v, 16 * i))
    e("s_nop 1")
    e("v_mov_b32 v%d, s%d" % (v, S_R0))
    for i in range(1, 4):
        e("%s v%d, s%d, v%d" % (op, v, S_R0 + i, v))

def ld_tile(dst, srd, i, voff, nt=""):
    soff = ["0", "s%d" % S_C4, "s%d" % S_C8, "s%d" % S_C12][i // 4]
    e("buffer_load_dwordx4 v[%d:%d], v%d, s[%d:%d], %s offen offset:%d%s" %
      (dst, dst + 3, voff, srd, srd + 3, soff, (i % 4) * 1024, nt))

def set_block():
    e("s_and_b32 s%d, s%d, 7" % (S_T0, S_BN))
    e("s_lshl_b32 s%d, s%d, 16" % (S_T0, S_T0))
    e("s_cmp_lt_u32 s%d, 8" % S_BN)
    e("s_cselect_b64 s[%d:%d], s[%d:%d], s[%d:%d]" % (SRD_PF, SRD_PF + 1, S_KB, S_KB + 1, S_VB, S_VB + 1))
    e("s_add_u32 s%d, s%d, s%d" % (SRD_PF, SRD_PF, S_T0))
    e("s_addc_u32 s%d, s%d, 0" % (SRD_PF + 1, SRD_PF + 1))
    e("s_cmp_lt_u32 s%d, 16" % S_BN)
    e("s_cselect_b32 s%d, 8192, 0" % (SRD_PF + 2))
    e("s_add_u32 s%d, s%d, 1" % (S_BN, S_BN))

def k_body(first):
    NG = 16 // G
    for g in range(NG):
        n0 = G * g
        if first:
            order = [("K", n) for n in range(D)]
            for gg in range(g):
                order += [("W", G * gg + a) for a in range(G)] + [("K", G * gg + D + a) for a in range(G)]
            idx = order.index(("K", n0 + G - 1))
            w = len(order) - 1 - idx
            lastk = D - 1 + G * g
            cut = lastk - WT
            if cut >= 0:
                w = min(w, len(order) - 1 - order.index(("K", cut)))
        else:
            w = WT
        e("s_waitcnt vmcnt(%d)" % w)
        for r in range(4):
            for a in range(G):
                t = V_RING + 4 * ((n0 + a) % D) + r
                if r == 0:
                    e("v_dot2_f32_bf16 v%d, v%d, v%d, 0" % (V_P + a, t, V_Q + r))
                else:
                    e("v_dot2_f32_bf16 v%d, v%d, v%d, v%d" % (V_P + a, t, V_Q + r, V_P + a))
        if first:
            for a in range(G):
                ld_tile(V_WO + 4 * (n0 + a), SRD_WO, n0 + a, V_OFF16, NTW)
        if (n0 + D) % 8 == 0:
            set_block()
        for a in range(G):
            ld_tile(V_RING + 4 * ((n0 + a) % D), SRD_PF, (n0 + a + D) % 8, V_OFF16, NT)
        for ror in (8, 4, 2, 1):
            if G == 2:
                e("s_nop 0")
            for a in range(G):
                e("v_add_f32_dpp v%d, v%d, v%d row_ror:%d%s" % (V_P + a, V_P + a, V_P + a, ror, DPP))
        for a in range(G):
            i = n0 + a
            e("v_cndmask_b32 v%d, v%d, v%d, s[%d:%d]" % (V_SCN, V_SCN, V_P + a, S_MASK + 2 * i, S_MASK + 2 * i + 1))
    e("v_mov_b32 v%d, v%d" % (V_SC, V_SC + 1))
    e("v_mov_b32 v%d, v%d" % (V_SC + 1, V_SC + 2))
    e("v_mov_b32 v%d, v%d" % (V_SC + 2, V_SC + 3))
    e("v_cvt_pk_bf16_f32 v%d, v%d, v%d" % (V_T, V_SCN, V_SCN))
    e("v_lshlrev_b32 v%d, 16, v%d" % (V_T, V_T))
    e("v_mul_f32 v%d, s%d, v%d" % (V_T, S_SCALE, V_T))
    e("v_cvt_pk_bf16_f32 v%d, v%d, v%d" % (V_T, V_T, V_T))
    e("v_lshlrev_b32 v%d, 16, v%d" % (V_SC + 3, V_T))

def k1():
    e(".globl %s" % KN)
    e(".p2align 8")
    e(".type %s,@function" % KN)
    e("%s:" % KN)
    e("s_cmp_ge_u32 s2, 256")
    e("s_cbranch_scc1 L_end")
    e("s_load_dwordx16 s[16:31], s[0:1], 0")
    e("s_load_dwordx4 s[32:35], s[0:1], 64")
    e("s_load_dwordx2 s[36:37], s[0:1], 96")
    e("v_lshrrev_b32 v5, 6, v0")
    e("v_and_b32 v%d, 63, v0" % V_LANE)
    e("s_nop 0")
    e("v_readfirstlane_b32 s%d, v5" % S_W)
    if os.environ.get("BADMAP"):
        e("s_lshr_b32 s%d, s2, 2" % S_H64)
        e("s_and_b32 s%d, s2, 3" % S_SPLIT)
        e("s_lshl_b32 s2, s%d, 6" % S_SPLIT)
        e("s_add_u32 s2, s2, s%d" % S_H64)
    elif os.environ.get("MAP2"):
        e("s_and_b32 s%d, s2, 7" % S_H64)
        e("s_lshl_b32 s%d, s%d, 3" % (S_H64, S_H64))
        e("s_bfe_u32 s%d, s2, 0x30003" % S_SPLIT)
        e("s_add_u32 s%d, s%d, s%d" % (S_H64, S_H64, S_SPLIT))
        e("s_lshr_b32 s%d, s2, 6" % S_SPLIT)
        e("s_mov_b32 s%d, s2" % S_T2)
        e("s_lshl_b32 s2, s%d, 6" % S_SPLIT)
        e("s_add_u32 s2, s2, s%d" % S_H64)
    else:
        e("s_and_b32 s%d, s2, 63" % S_H64)
        e("s_lshr_b32 s%d, s2, 6" % S_SPLIT)
    e("s_lshr_b32 s%d, s%d, 5" % (S_B, S_H64))
    e("s_and_b32 s%d, s%d, 31" % (S_H, S_H64))
    e("v_lshlrev_b32 v%d, 4, v%d" % (V_OFF16, V_LANE))
    e("v_lshrrev_b32 v5, 4, v%d" % V_LANE)
    e("v_and_b32 v6, 15, v%d" % V_LANE)
    e("v_lshlrev_b32 v7, 13, v5")
    e("v_lshl_add_u32 v%d, v6, 4, v7" % V_WQOFF)
    e("v_lshl_add_u32 v7, v6, 2, v5")
    e("v_lshlrev_b32 v7, 1, v7")
    e("s_mov_b32 s%d, 4096" % S_C4)
    e("s_mov_b32 s%d, 0x3fb8aa3b" % S_LOG2E)
    e("s_mov_b32 s%d, 0x3db504f3" % S_SCALE)
    e("s_waitcnt lgkmcnt(0)")
    e("s_cmp_eq_u32 s%d, 0" % S_B)
    e("s_cselect_b64 s[%d:%d], s[16:17], s[26:27]" % (S_PX, S_PX + 1))
    e("s_cselect_b64 s[%d:%d], s[18:19], s[28:29]" % (S_PK, S_PK + 1))
    e("s_cselect_b64 s[%d:%d], s[20:21], s[30:31]" % (S_PV, S_PV + 1))
    e("s_cselect_b64 s[%d:%d], s[22:23], s[32:33]" % (S_PWQ, S_PWQ + 1))
    e("s_cselect_b64 s[%d:%d], s[24:25], s[34:35]" % (S_PWO, S_PWO + 1))
    stamp(0)
    if STAMP:
        e("s_mov_b64 s[34:35], 0")
    e("s_mov_b32 s%d, 8192" % S_C8)
    e("s_mov_b32 s%d, 12288" % S_C12)
    e("s_mov_b32 s%d, 0" % S_BN)
    e("s_lshl_b32 s%d, s%d, 7" % (S_T0, S_W))
    e("s_add_u32 s%d, s%d, s%d" % (SRD_X, S_PX, S_T0))
    e("s_addc_u32 s%d, s%d, 0" % (SRD_X + 1, S_PX + 1))
    e("s_mov_b32 s%d, 128" % (SRD_X + 2))
    e("s_mov_b32 s%d, 0x00020000" % (SRD_X + 3))
    e("s_lshl_b32 s%d, s%d, 8" % (S_T0, S_H))
    e("s_lshl_b32 s%d, s%d, 19" % (S_T1, S_W))
    e("s_add_u32 s%d, s%d, s%d" % (S_T0, S_T0, S_T1))
    e("s_add_u32 s%d, s%d, s%d" % (SRD_WQ, S_PWQ, S_T0))
    e("s_addc_u32 s%d, s%d, 0" % (SRD_WQ + 1, S_PWQ + 1))
    e("s_mov_b32 s%d, %d" % (SRD_WQ + 2, 63 * 8192 + 256))
    e("s_mov_b32 s%d, 0x00020000" % (SRD_WQ + 3))
    e("buffer_load_ushort v%d, v7, s[%d:%d], 0 offen" % (V_X, SRD_X, SRD_X + 3))
    e("s_mov_b32 s%d, 0" % S_T0)
    for i in range(16):
        e("buffer_load_dwordx4 v[%d:%d], v%d, s[%d:%d], s%d offen%s" %
          (V_WQ + 4 * i, V_WQ + 4 * i + 3, V_WQOFF, SRD_WQ, SRD_WQ + 3, S_T0, NTW))
        if i != 15:
            e("s_add_u32 s%d, s%d, 32768" % (S_T0, S_T0))
    e("s_lshl_b32 s%d, s%d, 21" % (S_T0, S_H))
    e("s_lshl_b32 s%d, s%d, 19" % (S_T1, S_SPLIT))
    e("s_add_u32 s%d, s%d, s%d" % (S_T0, S_T0, S_T1))
    e("s_lshl_b32 s%d, s%d, 13" % (S_T1, S_W))
    e("s_add_u32 s%d, s%d, s%d" % (S_T0, S_T0, S_T1))
    e("s_add_u32 s%d, s%d, s%d" % (S_KB, S_PK, S_T0))
    e("s_addc_u32 s%d, s%d, 0" % (S_KB + 1, S_PK + 1))
    e("s_add_u32 s%d, s%d, s%d" % (S_VB, S_PV, S_T0))
    e("s_addc_u32 s%d, s%d, 0" % (S_VB + 1, S_PV + 1))
    e("s_mov_b32 s%d, 0x00020000" % (SRD_PF + 3))
    e("s_barrier")
    for n in range(D):
        if n % 8 == 0:
            set_block()
        ld_tile(V_RING + 4 * n, SRD_PF, n % 8, V_OFF16, NT)
    e("s_load_dwordx4 s[8:11], s[0:1], 80")
    e("s_lshl_b32 s%d, s%d, 17" % (S_T0, S_H))
    e("s_lshl_b32 s%d, s%d, 14" % (S_T1, S_W))
    e("s_add_u32 s%d, s%d, s%d" % (S_T0, S_T0, S_T1))
    e("s_add_u32 s%d, s%d, s%d" % (SRD_WO, S_PWO, S_T0))
    e("s_addc_u32 s%d, s%d, 0" % (SRD_WO + 1, S_PWO + 1))
    e("s_mov_b32 s%d, 16384" % (SRD_WO + 2))
    e("s_mov_b32 s%d, 0x00020000" % (SRD_WO + 3))
    e("s_mov_b32 s%d, s36" % SRD_WS)
    e("s_mov_b32 s%d, s37" % (SRD_WS + 1))
    e("s_mov_b32 s%d, %d" % (SRD_WS + 2, 256 * 2048 + 256 * 8))
    e("s_mov_b32 s%d, 0x00020000" % (SRD_WS + 3))
    for i in range(16):
        m = (0x00010001 << i) & 0xffffffff
        e("s_mov_b32 s%d, 0x%08x" % (S_MASK + 2 * i, m))
        e("s_mov_b32 s%d, 0x%08x" % (S_MASK + 2 * i + 1, m))
    for d in range(8):
        e("v_mov_b32 v%d, 0" % (V_ACC + d))
    e("s_waitcnt vmcnt(%d)" % (D + 15))
    e("v_lshlrev_b32 v%d, 16, v%d" % (V_X, V_X))
    e("s_nop 1")
    for i in range(16):
        e("s_waitcnt vmcnt(%d)" % (D + 15 - i))
        fma_tile(V_ACC, V_WQ + 4 * i, V_X, i)
    row_reduce8(V_ACC)
    e("v_lshrrev_b32 v5, 4, v%d" % V_LANE)
    e("v_and_b32 v6, 15, v%d" % V_LANE)
    e("v_lshlrev_b32 v7, 3, v5")
    e("v_lshl_add_u32 v7, v6, 5, v7")
    e("s_lshl_b32 s%d, s%d, 9" % (S_T0, S_W))
    e("v_add_u32 v%d, s%d, v7" % (V_A0, S_T0))
    e("ds_write_b64 v%d, v[%d:%d] offset:%d" % (V_A0, V_ACC, V_ACC + 1, LDS_Q))
    e("s_waitcnt lgkmcnt(0)")
    e("s_barrier")
    e("v_lshlrev_b32 v7, 5, v6")
    for w in range(8):
        e("ds_read_b128 v[%d:%d], v7 offset:%d" % (V_WQ + 8 * w, V_WQ + 8 * w + 3, LDS_Q + w * 512))
        e("ds_read_b128 v[%d:%d], v7 offset:%d" % (V_WQ + 8 * w + 4, V_WQ + 8 * w + 7, LDS_Q + w * 512 + 16))
    e("s_waitcnt lgkmcnt(0)")
    for w in range(1, 8):
        for d in range(8):
            e("v_add_f32 v%d, v%d, v%d" % (V_WQ + d, V_WQ + d, V_WQ + 8 * w + d))
    for r in range(4):
        e("v_cvt_pk_bf16_f32 v%d, v%d, v%d" % (V_Q + r, V_WQ + 2 * r, V_WQ + 2 * r + 1))
    stamp(1)
    e("s_nop 1")
    k_body(True)
    e("s_mov_b32 s%d, 0" % S_CNT)
    e("L_kloop:")
    k_body(False)
    e("s_add_u32 s%d, s%d, 1" % (S_CNT, S_CNT))
    e("s_cmp_lt_u32 s%d, 3" % S_CNT)
    e("s_cbranch_scc1 L_kloop")
    stamp(2)
    e("v_max_f32 v%d, v%d, v%d" % (V_M, V_SC, V_SC + 1))
    e("v_max3_f32 v%d, v%d, v%d, v%d" % (V_M, V_M, V_SC + 2, V_SC + 3))
    wave_allreduce("v_max_f32", V_M)
    for t in range(4):
        e("v_sub_f32 v%d, v%d, v%d" % (V_SC + t, V_SC + t, V_M))
    for t in range(4):
        e("v_mul_f32 v%d, s%d, v%d" % (V_SC + t, S_LOG2E, V_SC + t))
    for t in range(4):
        e("v_exp_f32 v%d, v%d" % (V_SC + t, V_SC + t))
    e("s_nop 0")
    e("v_add_f32 v%d, v%d, v%d" % (V_L, V_SC, V_SC + 1))
    e("v_add_f32 v%d, v%d, v%d" % (V_L, V_L, V_SC + 2))
    e("v_add_f32 v%d, v%d, v%d" % (V_L, V_L, V_SC + 3))
    wave_allreduce("v_add_f32", V_L)
    e("s_lshl_b32 s%d, s%d, 3" % (S_T0, S_W))
    e("v_mov_b32 v5, s%d" % S_T0)
    e("s_mov_b64 exec, 1")
    e("ds_write_b64 v5, v[%d:%d] offset:%d" % (V_M, V_L, LDS_ML))
    e("s_mov_b64 exec, -1")
    for d in range(8):
        e("v_mov_b32 v%d, 0" % (V_ACC + d))
    if not NOUNP:
        e("s_waitcnt vmcnt(%d)" % D)
        for r in range(16):
            for k in range(4):
                unpack(V_U + 8 * r + 2 * k, V_U + 8 * r + 2 * k + 1, V_WO + 4 * r + k)
    e("s_mov_b32 s%d, 0" % S_CNT)
    e("L_vloop:")
    for g in range(16 // G):
        n0 = G * g
        e("s_waitcnt vmcnt(%d)" % WT)
        for a in range(G):
            fma_tile(V_ACC, V_RING + 4 * ((n0 + a) % D), V_SC, n0 + a)
        if (n0 + D) % 8 == 0:
            set_block()
        for a in range(G):
            ld_tile(V_RING + 4 * ((n0 + a) % D), SRD_PF, (n0 + a + D) % 8, V_OFF16, NT)
    e("v_mov_b32 v%d, v%d" % (V_SC, V_SC + 1))
    e("v_mov_b32 v%d, v%d" % (V_SC + 1, V_SC + 2))
    e("v_mov_b32 v%d, v%d" % (V_SC + 2, V_SC + 3))
    e("s_add_u32 s%d, s%d, 1" % (S_CNT, S_CNT))
    e("s_cmp_lt_u32 s%d, 4" % S_CNT)
    e("s_cbranch_scc1 L_vloop")
    stamp(3)
    row_reduce8(V_ACC)
    e("ds_write_b64 v%d, v[%d:%d] offset:%d" % (V_A0, V_ACC, V_ACC + 1, LDS_O))
    e("v_mov_b32 v5, 0")
    e("s_lshl_b32 s%d, s%d, 6" % (S_T0, S_W))
    e("v_lshl_add_u32 v7, v6, 2, s%d" % S_T0)
    e("s_waitcnt lgkmcnt(0)")
    e("s_barrier")
    ML = V_ML
    OP = V_OP
    for i in range(4):
        e("ds_read_b128 v[%d:%d], v5 offset:%d" % (ML + 4 * i, ML + 4 * i + 3, LDS_ML + 16 * i))
    for w in range(8):
        e("ds_read_b32 v%d, v7 offset:%d" % (OP + w, LDS_O + 512 * w))
    e("s_waitcnt lgkmcnt(8)")
    e("v_max3_f32 v%d, v%d, v%d, v%d" % (V_M, ML + 0, ML + 2, ML + 4))
    e("v_max3_f32 v%d, v%d, v%d, v%d" % (V_M, V_M, ML + 6, ML + 8))
    e("v_max3_f32 v%d, v%d, v%d, v%d" % (V_M, V_M, ML + 10, ML + 12))
    e("v_max_f32 v%d, v%d, v%d" % (V_M, V_M, ML + 14))
    for w in range(8):
        e("v_sub_f32 v%d, v%d, v%d" % (ML + 2 * w, ML + 2 * w, V_M))
    for w in range(8):
        e("v_mul_f32 v%d, s%d, v%d" % (ML + 2 * w, S_LOG2E, ML + 2 * w))
    for w in range(8):
        e("v_exp_f32 v%d, v%d" % (ML + 2 * w, ML + 2 * w))
    e("s_waitcnt lgkmcnt(0)")
    VO = V_SC
    e("v_mul_f32 v%d, v%d, v%d" % (VO, ML, OP))
    for w in range(1, 8):
        e("v_fmac_f32 v%d, v%d, v%d" % (VO, ML + 2 * w, OP + w))
    e("v_mul_f32 v%d, v%d, v%d" % (V_L, ML, ML + 1))
    for w in range(1, 8):
        e("v_fmac_f32 v%d, v%d, v%d" % (V_L, ML + 2 * w, ML + 2 * w + 1))
    if NOUNP:
        for d in range(8):
            e("v_mov_b32 v%d, 0" % (V_ACC + d))
        for r in range(16):
            fma_tile(V_ACC, V_WO + 4 * r, VO, r)
    else:
      for r in range(16):
        for d in range(8):
            if r == 0:
                e("v_mul_f32_dpp v%d, v%d, v%d row_newbcast:%d%s" % (V_ACC + d, VO, V_U + 8 * r + d, r, DPP))
            else:
                e("v_fmac_f32_dpp v%d, v%d, v%d row_newbcast:%d%s" % (V_ACC + d, VO, V_U + 8 * r + d, r, DPP))
    e("s_lshl_b32 s%d, s%d, 11" % (S_T0, S_W))
    e("v_lshl_add_u32 v5, v%d, 5, s%d" % (V_LANE, S_T0))
    e("ds_write_b128 v5, v[%d:%d] offset:%d" % (V_ACC, V_ACC + 3, LDS_Y))
    e("ds_write_b128 v5, v[%d:%d] offset:%d" % (V_ACC + 4, V_ACC + 7, LDS_Y + 16))
    e("v_lshlrev_b32 v5, 4, v0")
    e("s_waitcnt vmcnt(0) lgkmcnt(0)")
    e("s_barrier")
    e("s_cmp_ge_u32 s%d, 2" % S_W)
    e("s_cbranch_scc1 L_stored")
    YR = V_RING
    for w in range(8):
        e("ds_read_b128 v[%d:%d], v5 offset:%d" % (YR + 4 * w, YR + 4 * w + 3, LDS_Y + 2048 * w))
    e("s_lshl_b32 s%d, s2, 11" % S_T0)
    e("s_lshl_b32 s%d, s2, 3" % S_T1)
    e("s_add_u32 s%d, s%d, %d" % (S_T1, S_T1, 256 * 2048))
    e("s_waitcnt lgkmcnt(0)")
    for w in range(1, 8):
        for d in range(4):
            e("v_add_f32 v%d, v%d, v%d" % (YR + d, YR + d, YR + 4 * w + d))
    e("buffer_store_dwordx4 v[%d:%d], v5, s[%d:%d], s%d offen sc1" % (YR, YR + 3, SRD_WS, SRD_WS + 3, S_T0))
    e("s_cmp_lg_u32 s%d, 0" % S_W)
    e("s_cbranch_scc1 L_stored")
    e("s_mov_b64 exec, 1")
    e("buffer_store_dwordx2 v[%d:%d], v5, s[%d:%d], s%d offen sc1" % (V_M, V_L, SRD_WS, SRD_WS + 3, S_T1))
    e("s_mov_b64 exec, -1")
    e("L_stored:")
    e("s_mov_b32 s%d, s%d" % (SRD_DBG, S_PDBG))
    e("s_mov_b32 s%d, s%d" % (SRD_DBG + 1, S_PDBG + 1))
    e("s_mov_b32 s%d, 256" % (SRD_DBG + 2))
    e("s_mov_b32 s%d, 0x00020000" % (SRD_DBG + 3))
    e("s_mov_b32 s%d, s%d" % (SRD_OUT, S_POUT))
    e("s_mov_b32 s%d, s%d" % (SRD_OUT + 1, S_POUT + 1))
    e("s_mov_b32 s%d, 2048" % (SRD_OUT + 2))
    e("s_mov_b32 s%d, 0x00020000" % (SRD_OUT + 3))
    e("v_mov_b32 v5, 0")
    e("s_waitcnt vmcnt(0)")
    e("s_barrier")
    stamp(4)
    e("s_cmp_lg_u32 s%d, 0" % S_W)
    e("s_cbranch_scc1 L_wait_role")
    if STAMP:
        e("s_mov_b32 s%d, %d" % (SRD_WS + 2, 2 << 20))
        e("s_lshl_b32 s%d, s2, 6" % S_T0)
        e("s_add_u32 s%d, s%d, %d" % (S_T0, S_T0, 1 << 20))
        e("s_mov_b64 exec, 1")
        for k in range(8):
            e("v_mov_b32 v8, s%d" % (STR[k]))
            e("v_mov_b32 v9, s%d" % (STR[k] + 1))
            e("buffer_store_dwordx2 v[8:9], v5, s[%d:%d], s%d offen offset:%d" % (SRD_WS, SRD_WS + 3, S_T0, 8 * k))
            e("s_nop 2")
        e("s_mov_b64 exec, -1")
    e("v_mov_b32 v7, 1")
    e("s_mov_b64 exec, 1")
    e("buffer_atomic_add v7, v5, s[%d:%d], 0 offen sc0" % (SRD_DBG, SRD_DBG + 3))
    e("s_waitcnt vmcnt(0)")
    e("s_mov_b64 exec, -1")
    e("v_readfirstlane_b32 s%d, v7" % S_T0)
    e("s_nop 3")
    e("s_cmp_lt_u32 s%d, %d" % (S_T0, 256 - NRED))
    e("s_cbranch_scc1 L_publish")
    e("s_cmp_eq_u32 s%d, 255" % S_T0)
    e("s_cbranch_scc1 L_publish")
    e("s_mov_b32 s%d, 0" % S_CNT)
    e("L_poll:")
    e("s_mov_b64 exec, 1")
    e("buffer_load_dword v7, v5, s[%d:%d], 0 offen sc1" % (SRD_DBG, SRD_DBG + 3))
    e("s_waitcnt vmcnt(0)")
    e("s_mov_b64 exec, -1")
    e("v_readfirstlane_b32 s%d, v7" % S_T1)
    e("s_nop 3")
    e("s_cmp_ge_u32 s%d, 256" % S_T1)
    e("s_cbranch_scc1 L_publish")
    e("s_add_u32 s%d, s%d, 1" % (S_CNT, S_CNT))
    e("s_cmp_lt_u32 s%d, 0x100000" % S_CNT)
    e("s_cbranch_scc0 L_publish")
    e("s_sleep 1")
    e("s_branch L_poll")
    e("L_publish:")
    stamp(5)
    e("v_mov_b32 v7, s%d" % S_T0)
    e("ds_write_b32 v5, v7 offset:%d" % LDS_ROLE)
    e("s_waitcnt lgkmcnt(0)")
    e("L_wait_role:")
    e("s_barrier")
    e("s_cmp_ge_u32 s%d, 4" % S_W)
    e("s_cbranch_scc1 L_end")
    e("ds_read_b32 v7, v5 offset:%d" % LDS_ROLE)
    e("s_waitcnt lgkmcnt(0)")
    e("v_readfirstlane_b32 s%d, v7" % S_T0)
    e("s_nop 3")
    e("s_cmp_lt_u32 s%d, %d" % (S_T0, 256 - NRED))
    e("s_cbranch_scc1 L_end")
    e("s_sub_u32 s%d, s%d, %d" % (S_T0, S_T0, 256 - NRED))
    e("s_lshr_b32 s%d, s%d, 4" % (S_B, S_T0))
    e("s_and_b32 s%d, s%d, 15" % (S_H, S_T0))
    e("v_lshrrev_b32 v1, 3, v0")
    e("v_and_b32 v2, 7, v0")
    e("s_lshl_b32 s%d, s%d, 5" % (S_T0, S_B))
    e("v_add_u32 v3, s%d, v1" % S_T0)
    e("s_lshl_b32 s%d, s%d, 7" % (S_T1, S_H))
    e("v_lshl_add_u32 v4, v2, 4, s%d" % S_T1)
    e("v_lshl_add_u32 v4, v3, 11, v4")
    e("v_lshlrev_b32 v5, 3, v3")
    for s in range(4):
        e("s_mov_b32 s%d, %d" % (16 + s, 256 * 2048 + s * 64 * 8))
        e("s_mov_b32 s%d, %d" % (20 + s, s * 64 * 2048))
    for s in range(4):
        e("buffer_load_dwordx2 v[%d:%d], v5, s[%d:%d], s%d offen sc1" % (8 + 2 * s, 9 + 2 * s, SRD_WS, SRD_WS + 3, 16 + s))
    for s in range(4):
        e("buffer_load_dwordx4 v[%d:%d], v4, s[%d:%d], s%d offen sc1" % (16 + 4 * s, 19 + 4 * s, SRD_WS, SRD_WS + 3, 20 + s))
    e("s_waitcnt vmcnt(4)")
    e("v_max3_f32 v6, v8, v10, v12")
    e("v_max_f32 v6, v6, v14")
    for s in range(4):
        e("v_sub_f32 v%d, v%d, v6" % (8 + 2 * s, 8 + 2 * s))
    for s in range(4):
        e("v_mul_f32 v%d, s%d, v%d" % (8 + 2 * s, S_LOG2E, 8 + 2 * s))
    for s in range(4):
        e("v_exp_f32 v%d, v%d" % (8 + 2 * s, 8 + 2 * s))
    e("s_nop 0")
    e("v_mul_f32 v7, v8, v9")
    for s in range(1, 4):
        e("v_fmac_f32 v7, v%d, v%d" % (8 + 2 * s, 9 + 2 * s))
    e("v_rcp_f32 v7, v7")
    e("s_nop 0")
    for s in range(4):
        e("v_mul_f32 v%d, v%d, v7" % (8 + 2 * s, 8 + 2 * s))
    e("s_waitcnt vmcnt(0)")
    stamp(6)
    for d in range(4):
        e("v_mul_f32 v%d, v8, v%d" % (32 + d, 16 + d))
    for s in range(1, 4):
        for d in range(4):
            e("v_fmac_f32 v%d, v%d, v%d" % (32 + d, 8 + 2 * s, 16 + 4 * s + d))
    e("s_nop 1")
    for d in range(4):
        e("v_add_f32_dpp v%d, v%d, v%d row_ror:8%s" % (32 + d, 32 + d, 32 + d, DPP))
    e("v_lshrrev_b32 v6, 4, v0")
    e("v_lshlrev_b32 v6, 7, v6")
    e("v_lshl_add_u32 v6, v2, 4, v6")
    e("ds_write_b128 v6, v[32:35] offset:%d" % LDS_R)
    e("s_waitcnt lgkmcnt(0)")
    e("s_barrier")
    e("s_cmp_lg_u32 s%d, 0" % S_W)
    e("s_cbranch_scc1 L_end")
    e("v_lshlrev_b32 v6, 3, v0")
    e("v_lshlrev_b32 v7, 2, v0")
    e("s_mov_b64 exec, 0xffff")
    for r in range(16):
        e("ds_read_b64 v[%d:%d], v6 offset:%d" % (8 + 2 * r, 9 + 2 * r, LDS_R + 128 * r))
    e("s_lshl_b32 s%d, s%d, 10" % (S_T0, S_B))
    e("s_lshl_b32 s%d, s%d, 6" % (S_T1, S_H))
    e("s_add_u32 s%d, s%d, s%d" % (S_T0, S_T0, S_T1))
    e("s_waitcnt lgkmcnt(0)")
    for r in range(1, 16):
        e("v_add_f32 v8, v8, v%d" % (8 + 2 * r))
        e("v_add_f32 v9, v9, v%d" % (9 + 2 * r))
    e("v_cvt_pk_bf16_f32 v8, v8, v9")
    e("buffer_store_dword v8, v7, s[%d:%d], s%d offen" % (SRD_OUT, SRD_OUT + 3, S_T0))
    if STAMP:
        e("s_waitcnt vmcnt(0)")
        stamp(7)
        e("s_lshl_b32 s%d, s2, 6" % S_T0)
        e("s_add_u32 s%d, s%d, %d" % (S_T0, S_T0, 1 << 20))
        e("s_mov_b64 exec, 1")
        e("v_mov_b32 v5, 0")
        for k in (5, 6, 7):
            e("v_mov_b32 v8, s%d" % (STR[k]))
            e("v_mov_b32 v9, s%d" % (STR[k] + 1))
            e("buffer_store_dwordx2 v[8:9], v5, s[%d:%d], s%d offen offset:%d" % (SRD_WS, SRD_WS + 3, S_T0, 8 * k))
            e("s_nop 2")
    e("L_end:")
    e("s_endpgm")

def kd(name, vgpr, sgpr):
    return """.amdhsa_kernel %s
  .amdhsa_next_free_vgpr %d
  .amdhsa_next_free_sgpr %d
  .amdhsa_accum_offset %d
  .amdhsa_group_segment_fixed_size 0
  .amdhsa_kernarg_size 104
  .amdhsa_user_sgpr_count 2
  .amdhsa_user_sgpr_kernarg_segment_ptr 1
  .amdhsa_system_sgpr_workgroup_id_x 1
  .amdhsa_float_denorm_mode_32 3
.end_amdhsa_kernel
""" % (name, vgpr, sgpr, (vgpr + 3) // 4 * 4)

k1()
txt = HEADER + "\n".join(L) + "\n" + '.section .rodata,"a"\n.p2align 6\n' + kd(KN, 256, 102)
open(OUT, "w").write(txt)
print("wrote", OUT, len(L), "lines")
```

```python
import sys, os

NAME = "concat_heads__mha_block_cached__gqa_block_cached__decode"
KN = NAME + "_kernel"
OUT = sys.argv[1] if len(sys.argv) > 1 else "cdna_kernels/%s.s" % NAME
NT = " nt"
NTW = " nt"
WT = int(os.environ.get("W", "4"))
STAMP = os.environ.get("STAMP", "") == "1"
NRED = 32

HEADER = """; Kernarg layout for this problem (104 bytes, ptrs only, base s[0:1]):
; @launch grid=(256,1,1) block=(512,1,1) lds=36864
.amdgcn_target "amdgcn-amd-amdhsa--gfx950"
.text
"""

L = []
def e(s=""):
    L.append("    " + s if s and not s.endswith(":") else s)

DPP = " row_mask:0xf bank_mask:0xf"

S_W = 3; S_H64 = 4; S_SPLIT = 5; S_B = 6; S_H = 7
S_PX = 8; S_PK = 10; S_PV = 12; S_PWQ = 14
S_POUT = 8; S_PDBG = 10
S_PWO = 38
SRD_PF = 40
SRD_WQ = 44
SRD_OUT = 44
SRD_WO = 48
SRD_DBG = 48
SRD_X = 52
SRD_WS = 56
S_KB = 60
S_VB = 62
S_C4 = 64
S_LOG2E = 65; S_SCALE = 66; S_T0 = 67; S_T1 = 68; S_CNT = 69
S_MASK = 70
S_EXLO = 86
S_CUR = 88; S_NXT = 89
S_R0 = 16
S_C8 = 21; S_C12 = 22; S_T2 = 23

V_LANE = 1
V_OFF16 = 2
V_WQOFF = 3
V_X = 4
V_Q = 8
V_PP = 12
V_SADDR = 13
V_CLAIM = 14
V_ONE = 15
V_SCN = 16
V_ZERO = 17
V_SA = 18
V_P = 20
V_T = 24
V_ACC = 32
V_M = 40
V_L = 41
V_A0 = 42
V_OP = 44
V_RING = 64
V_ML = 96
V_U = 112
V_WQ = 128
V_WO = 192

LDS_Q = 0
LDS_O = 4096
LDS_M = 8192
LDS_L = 8224
LDS_CTR = 8256
LDS_ROLE = 8320
LDS_Y = 8448
LDS_R = 24832
LDS_S = 26880

STR = [24, 26, 28, 30, 32, 34, 12, 14]
def stamp(k):
    if STAMP:
        e("s_memrealtime s[%d:%d]" % (STR[k], STR[k] + 1))
        e("s_waitcnt lgkmcnt(0)")

def unpack(dst_lo, dst_hi, src):
    e("v_lshlrev_b32 v%d, 16, v%d" % (dst_lo, src))
    e("v_and_b32 v%d, 0xffff0000, v%d" % (dst_hi, src))

def fma_tile(acc, tile, vsrc, lane):
    for r in range(4):
        unpack(V_T + 2 * r, V_T + 2 * r + 1, tile + r)
    for d in range(8):
        e("v_fmac_f32_dpp v%d, v%d, v%d row_newbcast:%d%s" % (acc + d, vsrc, V_T + d, lane, DPP))

def row_reduce8(acc):
    e("s_nop 1")
    for d in range(4):
        e("v_permlane32_swap_b32 v%d, v%d" % (acc + d, acc + d + 4))
    e("s_nop 1")
    for d in range(4):
        e("v_add_f32 v%d, v%d, v%d" % (acc + d, acc + d, acc + d + 4))
    e("s_nop 1")
    for d in range(2):
        e("v_permlane16_swap_b32 v%d, v%d" % (acc + d, acc + d + 2))
    e("s_nop 1")
    for d in range(2):
        e("v_add_f32 v%d, v%d, v%d" % (acc + d, acc + d, acc + d + 2))

def wave_allreduce(op, v):
    for r in (8, 4, 2, 1):
        e("s_nop 1")
        e("%s_dpp v%d, v%d, v%d row_ror:%d%s" % (op, v, v, v, r, DPP))
    e("s_nop 1")
    for i in range(4):
        e("v_readlane_b32 s%d, v%d, %d" % (S_R0 + i, v, 16 * i))
    e("s_nop 1")
    e("v_mov_b32 v%d, s%d" % (v, S_R0))
    for i in range(1, 4):
        e("%s v%d, s%d, v%d" % (op, v, S_R0 + i, v))

def ld_tile(dst, srd, i, voff, nt=""):
    soff = ["0", "s%d" % S_C4, "s%d" % S_C8, "s%d" % S_C12][i // 4]
    e("buffer_load_dwordx4 v[%d:%d], v%d, s[%d:%d], %s offen offset:%d%s" %
      (dst, dst + 3, voff, srd, srd + 3, soff, (i % 4) * 1024, nt))

def set_block(sb):
    e("s_and_b32 s%d, s%d, 63" % (S_T0, sb))
    e("s_lshl_b32 s%d, s%d, 13" % (S_T0, S_T0))
    e("s_cmp_lt_u32 s%d, 64" % sb)
    e("s_cselect_b64 s[%d:%d], s[%d:%d], s[%d:%d]" % (SRD_PF, SRD_PF + 1, S_KB, S_KB + 1, S_VB, S_VB + 1))
    e("s_add_u32 s%d, s%d, s%d" % (SRD_PF, SRD_PF, S_T0))
    e("s_addc_u32 s%d, s%d, 0" % (SRD_PF + 1, SRD_PF + 1))
    e("s_cmp_lt_u32 s%d, 128" % sb)
    e("s_cselect_b32 s%d, 8192, 0" % (SRD_PF + 2))

def claim():
    e("s_mov_b64 exec, 1")
    e("ds_add_rtn_u32 v%d, v%d, v%d offset:%d" % (V_CLAIM, V_ZERO, V_ONE, LDS_CTR))
    e("s_mov_b64 exec, -1")

def rotate():
    e("v_readfirstlane_b32 s%d, v%d" % (S_T1, V_CLAIM))
    e("s_mov_b32 s%d, s%d" % (S_CUR, S_NXT))
    e("s_nop 2")
    e("s_min_u32 s%d, s%d, 128" % (S_NXT, S_T1))

def k_body(peel):
    claim()
    set_block(S_NXT)
    e("s_lshl_b32 s%d, s%d, 7" % (S_T1, S_CUR))
    e("v_add_u32 v%d, s%d, v%d" % (V_SA, S_T1, V_SADDR))
    for g in range(2):
        n0 = 4 * g
        if peel is not None:
            order = [("K", n) for n in range(8)]
            for gg in range(2 * peel + g):
                order += [("W", 4 * gg + a) for a in range(4)] + [("K", 8 + 4 * gg + a) for a in range(4)]
            need = 8 * peel + n0 + 3
            w = len(order) - 1 - order.index(("K", need))
            lastk = 7 + 4 * (2 * peel + g)
            cut = lastk - WT
            w = min(w, len(order) - 1 - order.index(("K", cut)))
        else:
            w = WT
        e("s_waitcnt vmcnt(%d)" % w)
        for r in range(4):
            for a in range(4):
                t = V_RING + 4 * (n0 + a) + r
                if r == 0:
                    e("v_dot2_f32_bf16 v%d, v%d, v%d, 0" % (V_P + a, t, V_Q + r))
                else:
                    e("v_dot2_f32_bf16 v%d, v%d, v%d, v%d" % (V_P + a, t, V_Q + r, V_P + a))
        if peel is not None:
            for a in range(4):
                i = 8 * peel + n0 + a
                ld_tile(V_WO + 4 * i, SRD_WO, i, V_OFF16, NTW)
        for a in range(4):
            ld_tile(V_RING + 4 * (n0 + a), SRD_PF, n0 + a, V_OFF16, NT)
        for ror in (8, 4, 2, 1):
            for a in range(4):
                e("v_add_f32_dpp v%d, v%d, v%d row_ror:%d%s" % (V_P + a, V_P + a, V_P + a, ror, DPP))
        for a in range(4):
            i = n0 + a
            e("v_cndmask_b32 v%d, v%d, v%d, s[%d:%d]" % (V_SCN, V_SCN, V_P + a, S_MASK + 2 * i, S_MASK + 2 * i + 1))
    e("v_cvt_pk_bf16_f32 v%d, v%d, v%d" % (V_T, V_SCN, V_SCN))
    e("v_lshlrev_b32 v%d, 16, v%d" % (V_T, V_T))
    e("v_mul_f32 v%d, s%d, v%d" % (V_T, S_SCALE, V_T))
    e("v_cvt_pk_bf16_f32 v%d, v%d, v%d" % (V_T, V_T, V_T))
    e("v_lshlrev_b32 v%d, 16, v%d" % (V_T, V_T))
    e("v_max_f32 v%d, v%d, v%d" % (V_M, V_M, V_T))
    e("s_mov_b64 exec, s[%d:%d]" % (S_EXLO, S_EXLO + 1))
    e("ds_write_b32 v%d, v%d offset:%d" % (V_SA, V_T, LDS_S))
    e("s_mov_b64 exec, -1")
    e("s_waitcnt lgkmcnt(0)")
    rotate()

def k1():
    e(".globl %s" % KN)
    e(".p2align 8")
    e(".type %s,@function" % KN)
    e("%s:" % KN)
    e("s_cmp_ge_u32 s2, 256")
    e("s_cbranch_scc1 L_end")
    e("s_load_dwordx16 s[16:31], s[0:1], 0")
    e("s_load_dwordx4 s[32:35], s[0:1], 64")
    e("s_load_dwordx2 s[36:37], s[0:1], 96")
    e("v_lshrrev_b32 v5, 6, v0")
    e("v_and_b32 v%d, 63, v0" % V_LANE)
    e("s_nop 0")
    e("v_readfirstlane_b32 s%d, v5" % S_W)
    e("s_and_b32 s%d, s2, 63" % S_H64)
    e("s_lshr_b32 s%d, s2, 6" % S_SPLIT)
    e("s_lshr_b32 s%d, s%d, 5" % (S_B, S_H64))
    e("s_and_b32 s%d, s%d, 31" % (S_H, S_H64))
    e("v_lshlrev_b32 v%d, 4, v%d" % (V_OFF16, V_LANE))
    e("v_lshrrev_b32 v5, 4, v%d" % V_LANE)
    e("v_and_b32 v6, 15, v%d" % V_LANE)
    e("v_lshlrev_b32 v7, 13, v5")
    e("v_lshl_add_u32 v%d, v6, 4, v7" % V_WQOFF)
    e("v_lshl_add_u32 v7, v6, 2, v5")
    e("v_lshlrev_b32 v7, 1, v7")
    e("s_mov_b32 s%d, 4096" % S_C4)
    e("s_mov_b32 s%d, 0x3fb8aa3b" % S_LOG2E)
    e("s_mov_b32 s%d, 0x3db504f3" % S_SCALE)
    e("s_waitcnt lgkmcnt(0)")
    e("s_cmp_eq_u32 s%d, 0" % S_B)
    e("s_cselect_b64 s[%d:%d], s[16:17], s[26:27]" % (S_PX, S_PX + 1))
    e("s_cselect_b64 s[%d:%d], s[18:19], s[28:29]" % (S_PK, S_PK + 1))
    e("s_cselect_b64 s[%d:%d], s[20:21], s[30:31]" % (S_PV, S_PV + 1))
    e("s_cselect_b64 s[%d:%d], s[22:23], s[32:33]" % (S_PWQ, S_PWQ + 1))
    e("s_cselect_b64 s[%d:%d], s[24:25], s[34:35]" % (S_PWO, S_PWO + 1))
    stamp(0)
    e("s_mov_b32 s%d, 8192" % S_C8)
    e("s_mov_b32 s%d, 12288" % S_C12)
    e("s_lshl_b32 s%d, s%d, 7" % (S_T0, S_W))
    e("s_add_u32 s%d, s%d, s%d" % (SRD_X, S_PX, S_T0))
    e("s_addc_u32 s%d, s%d, 0" % (SRD_X + 1, S_PX + 1))
    e("s_mov_b32 s%d, 128" % (SRD_X + 2))
    e("s_mov_b32 s%d, 0x00020000" % (SRD_X + 3))
    e("s_lshl_b32 s%d, s%d, 8" % (S_T0, S_H))
    e("s_lshl_b32 s%d, s%d, 19" % (S_T1, S_W))
    e("s_add_u32 s%d, s%d, s%d" % (S_T0, S_T0, S_T1))
    e("s_add_u32 s%d, s%d, s%d" % (SRD_WQ, S_PWQ, S_T0))
    e("s_addc_u32 s%d, s%d, 0" % (SRD_WQ + 1, S_PWQ + 1))
    e("s_mov_b32 s%d, %d" % (SRD_WQ + 2, 63 * 8192 + 256))
    e("s_mov_b32 s%d, 0x00020000" % (SRD_WQ + 3))
    e("buffer_load_ushort v%d, v7, s[%d:%d], 0 offen" % (V_X, SRD_X, SRD_X + 3))
    e("s_mov_b32 s%d, 0" % S_T0)
    for i in range(16):
        e("buffer_load_dwordx4 v[%d:%d], v%d, s[%d:%d], s%d offen%s" %
          (V_WQ + 4 * i, V_WQ + 4 * i + 3, V_WQOFF, SRD_WQ, SRD_WQ + 3, S_T0, NTW))
        if i != 15:
            e("s_add_u32 s%d, s%d, 32768" % (S_T0, S_T0))
    e("s_lshl_b32 s%d, s%d, 21" % (S_T0, S_H))
    e("s_lshl_b32 s%d, s%d, 19" % (S_T1, S_SPLIT))
    e("s_add_u32 s%d, s%d, s%d" % (S_T0, S_T0, S_T1))
    e("s_add_u32 s%d, s%d, s%d" % (S_KB, S_PK, S_T0))
    e("s_addc_u32 s%d, s%d, 0" % (S_KB + 1, S_PK + 1))
    e("s_add_u32 s%d, s%d, s%d" % (S_VB, S_PV, S_T0))
    e("s_addc_u32 s%d, s%d, 0" % (S_VB + 1, S_PV + 1))
    e("s_mov_b32 s%d, 0x00020000" % (SRD_PF + 3))
    e("s_mov_b32 s%d, s%d" % (S_CUR, S_W))
    e("s_add_u32 s%d, s%d, 8" % (S_NXT, S_W))
    e("s_barrier")
    set_block(S_CUR)
    for n in range(8):
        ld_tile(V_RING + 4 * n, SRD_PF, n, V_OFF16, NT)
    e("s_load_dwordx4 s[8:11], s[0:1], 80")
    e("s_lshl_b32 s%d, s%d, 17" % (S_T0, S_H))
    e("s_lshl_b32 s%d, s%d, 14" % (S_T1, S_W))
    e("s_add_u32 s%d, s%d, s%d" % (S_T0, S_T0, S_T1))
    e("s_add_u32 s%d, s%d, s%d" % (SRD_WO, S_PWO, S_T0))
    e("s_addc_u32 s%d, s%d, 0" % (SRD_WO + 1, S_PWO + 1))
    e("s_mov_b32 s%d, 16384" % (SRD_WO + 2))
    e("s_mov_b32 s%d, 0x00020000" % (SRD_WO + 3))
    e("s_mov_b32 s%d, s36" % SRD_WS)
    e("s_mov_b32 s%d, s37" % (SRD_WS + 1))
    e("s_mov_b32 s%d, %d" % (SRD_WS + 2, 256 * 2048 + 256 * 8))
    e("s_mov_b32 s%d, 0x00020000" % (SRD_WS + 3))
    for i in range(8):
        m = (0x00010001 << i) & 0xffffffff
        e("s_mov_b32 s%d, 0x%08x" % (S_MASK + 2 * i, m))
        e("s_mov_b32 s%d, 0x%08x" % (S_MASK + 2 * i + 1, m))
    e("s_mov_b32 s%d, 0x00ff00ff" % S_EXLO)
    e("s_mov_b32 s%d, 0x00ff00ff" % (S_EXLO + 1))
    for d in range(8):
        e("v_mov_b32 v%d, 0" % (V_ACC + d))
    e("v_mov_b32 v%d, 0" % V_ZERO)
    e("v_mov_b32 v%d, 1" % V_ONE)
    e("v_mov_b32 v%d, 0xff800000" % V_SCN)
    e("v_mov_b32 v%d, 0xff800000" % V_M)
    e("v_and_b32 v7, 7, v6")
    e("v_lshl_add_u32 v7, v7, 2, v5")
    e("v_lshlrev_b32 v%d, 2, v7" % V_SADDR)
    e("s_cmp_lg_u32 s%d, 0" % S_W)
    e("s_cbranch_scc1 L_noinit")
    e("v_mov_b32 v7, 16")
    e("ds_write_b32 v%d, v7 offset:%d" % (V_ZERO, LDS_CTR))
    e("L_noinit:")
    e("s_waitcnt vmcnt(%d)" % (8 + 15))
    e("v_lshlrev_b32 v%d, 16, v%d" % (V_X, V_X))
    e("s_nop 1")
    for i in range(16):
        e("s_waitcnt vmcnt(%d)" % (8 + 15 - i))
        fma_tile(V_ACC, V_WQ + 4 * i, V_X, i)
    row_reduce8(V_ACC)
    e("v_lshlrev_b32 v7, 3, v5")
    e("v_lshl_add_u32 v7, v6, 5, v7")
    e("s_lshl_b32 s%d, s%d, 9" % (S_T0, S_W))
    e("v_add_u32 v%d, s%d, v7" % (V_A0, S_T0))
    e("ds_write_b64 v%d, v[%d:%d] offset:%d" % (V_A0, V_ACC, V_ACC + 1, LDS_Q))
    e("s_waitcnt lgkmcnt(0)")
    e("s_barrier")
    e("v_lshlrev_b32 v7, 5, v6")
    for w in range(8):
        e("ds_read_b128 v[%d:%d], v7 offset:%d" % (V_WQ + 8 * w, V_WQ + 8 * w + 3, LDS_Q + w * 512))
        e("ds_read_b128 v[%d:%d], v7 offset:%d" % (V_WQ + 8 * w + 4, V_WQ + 8 * w + 7, LDS_Q + w * 512 + 16))
    e("s_waitcnt lgkmcnt(0)")
    for w in range(1, 8):
        for d in range(8):
            e("v_add_f32 v%d, v%d, v%d" % (V_WQ + d, V_WQ + d, V_WQ + 8 * w + d))
    for r in range(4):
        e("v_cvt_pk_bf16_f32 v%d, v%d, v%d" % (V_Q + r, V_WQ + 2 * r, V_WQ + 2 * r + 1))
    stamp(1)
    k_body(0)
    k_body(1)
    e("s_cmp_ge_u32 s%d, 64" % S_CUR)
    e("s_cbranch_scc1 L_kdone")
    e("L_kloop:")
    k_body(None)
    e("s_cmp_lt_u32 s%d, 64" % S_CUR)
    e("s_cbranch_scc1 L_kloop")
    e("L_kdone:")
    stamp(2)
    wave_allreduce("v_max_f32", V_M)
    e("s_lshl_b32 s%d, s%d, 2" % (S_T0, S_W))
    e("v_mov_b32 v5, s%d" % S_T0)
    e("s_mov_b64 exec, 1")
    e("ds_write_b32 v5, v%d offset:%d" % (V_M, LDS_M))
    e("s_mov_b64 exec, -1")
    for d in range(8):
        e("v_mov_b32 v%d, 0" % (V_ACC + d))
    e("v_mov_b32 v%d, 0" % V_L)
    e("s_waitcnt vmcnt(8)")
    for r in range(16):
        for k in range(4):
            unpack(V_U + 8 * r + 2 * k, V_U + 8 * r + 2 * k + 1, V_WO + 4 * r + k)
    e("s_waitcnt lgkmcnt(0)")
    e("s_barrier")
    e("ds_read_b128 v[%d:%d], v%d offset:%d" % (V_ML, V_ML + 3, V_ZERO, LDS_M))
    e("ds_read_b128 v[%d:%d], v%d offset:%d" % (V_ML + 4, V_ML + 7, V_ZERO, LDS_M + 16))
    e("s_waitcnt lgkmcnt(0)")
    e("v_max3_f32 v%d, v%d, v%d, v%d" % (V_M, V_ML, V_ML + 1, V_ML + 2))
    e("v_max3_f32 v%d, v%d, v%d, v%d" % (V_M, V_M, V_ML + 3, V_ML + 4))
    e("v_max3_f32 v%d, v%d, v%d, v%d" % (V_M, V_M, V_ML + 5, V_ML + 6))
    e("v_max_f32 v%d, v%d, v%d" % (V_M, V_M, V_ML + 7))
    e("s_cmp_ge_u32 s%d, 128" % S_CUR)
    e("s_cbranch_scc1 L_vdone")
    e("L_vloop:")
    e("s_lshl_b32 s%d, s%d, 7" % (S_T1, S_CUR))
    e("v_add_u32 v%d, s%d, v%d" % (V_SA, S_T1, V_SADDR))
    e("ds_read_b32 v%d, v%d offset:%d" % (V_PP, V_SA, LDS_S - 64 * 128))
    claim()
    set_block(S_NXT)
    e("s_waitcnt lgkmcnt(0)")
    e("v_sub_f32 v%d, v%d, v%d" % (V_PP, V_PP, V_M))
    e("v_mul_f32 v%d, s%d, v%d" % (V_PP, S_LOG2E, V_PP))
    e("v_exp_f32 v%d, v%d" % (V_PP, V_PP))
    e("s_nop 0")
    e("v_add_f32 v%d, v%d, v%d" % (V_L, V_L, V_PP))
    for g in range(2):
        n0 = 4 * g
        e("s_waitcnt vmcnt(%d)" % WT)
        for a in range(4):
            fma_tile(V_ACC, V_RING + 4 * (n0 + a), V_PP, n0 + a)
        for a in range(4):
            ld_tile(V_RING + 4 * (n0 + a), SRD_PF, n0 + a, V_OFF16, NT)
    rotate()
    e("s_cmp_lt_u32 s%d, 128" % S_CUR)
    e("s_cbranch_scc1 L_vloop")
    e("L_vdone:")
    stamp(3)
    row_reduce8(V_ACC)
    e("ds_write_b64 v%d, v[%d:%d] offset:%d" % (V_A0, V_ACC, V_ACC + 1, LDS_O))
    wave_allreduce("v_add_f32", V_L)
    e("s_mov_b64 exec, 1")
    e("ds_write_b32 v5, v%d offset:%d" % (V_L, LDS_L))
    e("s_mov_b64 exec, -1")
    e("s_lshl_b32 s%d, s%d, 6" % (S_T0, S_W))
    e("v_lshl_add_u32 v7, v6, 2, s%d" % S_T0)
    e("s_waitcnt lgkmcnt(0)")
    e("s_barrier")
    ML = V_ML
    OP = V_OP
    for w in range(8):
        e("ds_read_b32 v%d, v7 offset:%d" % (OP + w, LDS_O + 512 * w))
    e("ds_read_b128 v[%d:%d], v%d offset:%d" % (ML, ML + 3, V_ZERO, LDS_L))
    e("ds_read_b128 v[%d:%d], v%d offset:%d" % (ML + 4, ML + 7, V_ZERO, LDS_L + 16))
    e("s_waitcnt lgkmcnt(2)")
    VO = V_PP
    e("v_add_f32 v%d, v%d, v%d" % (VO, OP, OP + 1))
    for w in range(2, 8):
        e("v_add_f32 v%d, v%d, v%d" % (VO, VO, OP + w))
    e("s_nop 1")
    for r in range(16):
        for d in range(8):
            if r == 0:
                e("v_mul_f32_dpp v%d, v%d, v%d row_newbcast:%d%s" % (V_ACC + d, VO, V_U + 8 * r + d, r, DPP))
            else:
                e("v_fmac_f32_dpp v%d, v%d, v%d row_newbcast:%d%s" % (V_ACC + d, VO, V_U + 8 * r + d, r, DPP))
    e("s_lshl_b32 s%d, s%d, 11" % (S_T0, S_W))
    e("v_lshl_add_u32 v5, v%d, 5, s%d" % (V_LANE, S_T0))
    e("ds_write_b128 v5, v[%d:%d] offset:%d" % (V_ACC, V_ACC + 3, LDS_Y))
    e("ds_write_b128 v5, v[%d:%d] offset:%d" % (V_ACC + 4, V_ACC + 7, LDS_Y + 16))
    e("v_add_f32 v%d, v%d, v%d" % (V_L, ML, ML + 1))
    for w in range(2, 8):
        e("v_add_f32 v%d, v%d, v%d" % (V_L, V_L, ML + w))
    e("v_mul_f32 v%d, 0.5, v%d" % (V_L, V_L))
    e("v_lshlrev_b32 v5, 4, v0")
    e("s_waitcnt vmcnt(0) lgkmcnt(0)")
    e("s_barrier")
    e("s_cmp_ge_u32 s%d, 2" % S_W)
    e("s_cbranch_scc1 L_stored")
    YR = V_RING
    for w in range(8):
        e("ds_read_b128 v[%d:%d], v5 offset:%d" % (YR + 4 * w, YR + 4 * w + 3, LDS_Y + 2048 * w))
    e("s_lshl_b32 s%d, s2, 11" % S_T0)
    e("s_lshl_b32 s%d, s2, 3" % S_T1)
    e("s_add_u32 s%d, s%d, %d" % (S_T1, S_T1, 256 * 2048))
    e("s_waitcnt lgkmcnt(0)")
    for w in range(1, 8):
        for d in range(4):
            e("v_add_f32 v%d, v%d, v%d" % (YR + d, YR + d, YR + 4 * w + d))
    e("buffer_store_dwordx4 v[%d:%d], v5, s[%d:%d], s%d offen sc1" % (YR, YR + 3, SRD_WS, SRD_WS + 3, S_T0))
    e("s_cmp_lg_u32 s%d, 0" % S_W)
    e("s_cbranch_scc1 L_stored")
    e("s_mov_b64 exec, 1")
    e("buffer_store_dwordx2 v[%d:%d], v5, s[%d:%d], s%d offen sc1" % (V_M, V_L, SRD_WS, SRD_WS + 3, S_T1))
    e("s_mov_b64 exec, -1")
    e("L_stored:")
    e("s_mov_b32 s%d, s%d" % (SRD_DBG, S_PDBG))
    e("s_mov_b32 s%d, s%d" % (SRD_DBG + 1, S_PDBG + 1))
    e("s_mov_b32 s%d, 256" % (SRD_DBG + 2))
    e("s_mov_b32 s%d, 0x00020000" % (SRD_DBG + 3))
    e("s_mov_b32 s%d, s%d" % (SRD_OUT, S_POUT))
    e("s_mov_b32 s%d, s%d" % (SRD_OUT + 1, S_POUT + 1))
    e("s_mov_b32 s%d, 2048" % (SRD_OUT + 2))
    e("s_mov_b32 s%d, 0x00020000" % (SRD_OUT + 3))
    e("v_mov_b32 v5, 0")
    e("s_waitcnt vmcnt(0)")
    e("s_barrier")
    stamp(4)
    e("s_cmp_lg_u32 s%d, 0" % S_W)
    e("s_cbranch_scc1 L_wait_role")
    if STAMP:
        e("s_mov_b32 s%d, %d" % (SRD_WS + 2, 2 << 20))
        e("s_lshl_b32 s%d, s2, 6" % S_T0)
        e("s_add_u32 s%d, s%d, %d" % (S_T0, S_T0, 1 << 20))
        e("s_mov_b64 exec, 1")
        for k in range(8):
            e("v_mov_b32 v8, s%d" % (STR[k]))
            e("v_mov_b32 v9, s%d" % (STR[k] + 1))
            e("buffer_store_dwordx2 v[8:9], v5, s[%d:%d], s%d offen offset:%d" % (SRD_WS, SRD_WS + 3, S_T0, 8 * k))
            e("s_nop 2")
        e("s_mov_b64 exec, -1")
    e("v_mov_b32 v7, 1")
    e("s_mov_b64 exec, 1")
    e("buffer_atomic_add v7, v5, s[%d:%d], 0 offen sc0" % (SRD_DBG, SRD_DBG + 3))
    e("s_waitcnt vmcnt(0)")
    e("s_mov_b64 exec, -1")
    e("v_readfirstlane_b32 s%d, v7" % S_T0)
    e("s_nop 3")
    e("s_cmp_lt_u32 s%d, %d" % (S_T0, 256 - NRED))
    e("s_cbranch_scc1 L_publish")
    e("s_cmp_eq_u32 s%d, 255" % S_T0)
    e("s_cbranch_scc1 L_publish")
    e("s_mov_b32 s%d, 0" % S_CNT)
    e("L_poll:")
    e("s_mov_b64 exec, 1")
    e("buffer_load_dword v7, v5, s[%d:%d], 0 offen sc1" % (SRD_DBG, SRD_DBG + 3))
    e("s_waitcnt vmcnt(0)")
    e("s_mov_b64 exec, -1")
    e("v_readfirstlane_b32 s%d, v7" % S_T1)
    e("s_nop 3")
    e("s_cmp_ge_u32 s%d, 256" % S_T1)
    e("s_cbranch_scc1 L_publish")
    e("s_add_u32 s%d, s%d, 1" % (S_CNT, S_CNT))
    e("s_cmp_lt_u32 s%d, 0x100000" % S_CNT)
    e("s_cbranch_scc0 L_publish")
    e("s_sleep 1")
    e("s_branch L_poll")
    e("L_publish:")
    e("v_mov_b32 v7, s%d" % S_T0)
    e("ds_write_b32 v5, v7 offset:%d" % LDS_ROLE)
    e("s_waitcnt lgkmcnt(0)")
    e("L_wait_role:")
    e("s_barrier")
    e("s_cmp_ge_u32 s%d, 4" % S_W)
    e("s_cbranch_scc1 L_end")
    e("ds_read_b32 v7, v5 offset:%d" % LDS_ROLE)
    e("s_waitcnt lgkmcnt(0)")
    e("v_readfirstlane_b32 s%d, v7" % S_T0)
    e("s_nop 3")
    e("s_cmp_lt_u32 s%d, %d" % (S_T0, 256 - NRED))
    e("s_cbranch_scc1 L_end")
    e("s_sub_u32 s%d, s%d, %d" % (S_T0, S_T0, 256 - NRED))
    e("s_lshr_b32 s%d, s%d, 4" % (S_B, S_T0))
    e("s_and_b32 s%d, s%d, 15" % (S_H, S_T0))
    e("v_lshrrev_b32 v1, 3, v0")
    e("v_and_b32 v2, 7, v0")
    e("s_lshl_b32 s%d, s%d, 5" % (S_T0, S_B))
    e("v_add_u32 v3, s%d, v1" % S_T0)
    e("s_lshl_b32 s%d, s%d, 7" % (S_T1, S_H))
    e("v_lshl_add_u32 v4, v2, 4, s%d" % S_T1)
    e("v_lshl_add_u32 v4, v3, 11, v4")
    e("v_lshlrev_b32 v5, 3, v3")
    for s in range(4):
        e("s_mov_b32 s%d, %d" % (16 + s, 256 * 2048 + s * 64 * 8))
        e("s_mov_b32 s%d, %d" % (20 + s, s * 64 * 2048))
    for s in range(4):
        e("buffer_load_dwordx2 v[%d:%d], v5, s[%d:%d], s%d offen sc1" % (8 + 2 * s, 9 + 2 * s, SRD_WS, SRD_WS + 3, 16 + s))
    for s in range(4):
        e("buffer_load_dwordx4 v[%d:%d], v4, s[%d:%d], s%d offen sc1" % (16 + 4 * s, 19 + 4 * s, SRD_WS, SRD_WS + 3, 20 + s))
    e("s_waitcnt vmcnt(4)")
    e("v_max3_f32 v6, v8, v10, v12")
    e("v_max_f32 v6, v6, v14")
    for s in range(4):
        e("v_sub_f32 v%d, v%d, v6" % (8 + 2 * s, 8 + 2 * s))
    for s in range(4):
        e("v_mul_f32 v%d, s%d, v%d" % (8 + 2 * s, S_LOG2E, 8 + 2 * s))
    for s in range(4):
        e("v_exp_f32 v%d, v%d" % (8 + 2 * s, 8 + 2 * s))
    e("s_nop 0")
    e("v_mul_f32 v7, v8, v9")
    for s in range(1, 4):
        e("v_fmac_f32 v7, v%d, v%d" % (8 + 2 * s, 9 + 2 * s))
    e("v_rcp_f32 v7, v7")
    e("s_nop 0")
    for s in range(4):
        e("v_mul_f32 v%d, v%d, v7" % (8 + 2 * s, 8 + 2 * s))
    e("s_waitcnt vmcnt(0)")
    for d in range(4):
        e("v_mul_f32 v%d, v8, v%d" % (32 + d, 16 + d))
    for s in range(1, 4):
        for d in range(4):
            e("v_fmac_f32 v%d, v%d, v%d" % (32 + d, 8 + 2 * s, 16 + 4 * s + d))
    e("s_nop 1")
    for d in range(4):
        e("v_add_f32_dpp v%d, v%d, v%d row_ror:8%s" % (32 + d, 32 + d, 32 + d, DPP))
    e("v_lshrrev_b32 v6, 4, v0")
    e("v_lshlrev_b32 v6, 7, v6")
    e("v_lshl_add_u32 v6, v2, 4, v6")
    e("ds_write_b128 v6, v[32:35] offset:%d" % LDS_R)
    e("s_waitcnt lgkmcnt(0)")
    e("s_barrier")
    e("s_cmp_lg_u32 s%d, 0" % S_W)
    e("s_cbranch_scc1 L_end")
    e("v_lshlrev_b32 v6, 3, v0")
    e("v_lshlrev_b32 v7, 2, v0")
    e("s_mov_b64 exec, 0xffff")
    for r in range(16):
        e("ds_read_b64 v[%d:%d], v6 offset:%d" % (8 + 2 * r, 9 + 2 * r, LDS_R + 128 * r))
    e("s_lshl_b32 s%d, s%d, 10" % (S_T0, S_B))
    e("s_lshl_b32 s%d, s%d, 6" % (S_T1, S_H))
    e("s_add_u32 s%d, s%d, s%d" % (S_T0, S_T0, S_T1))
    e("s_waitcnt lgkmcnt(0)")
    for r in range(1, 16):
        e("v_add_f32 v8, v8, v%d" % (8 + 2 * r))
        e("v_add_f32 v9, v9, v%d" % (9 + 2 * r))
    e("v_cvt_pk_bf16_f32 v8, v8, v9")
    e("buffer_store_dword v8, v7, s[%d:%d], s%d offen" % (SRD_OUT, SRD_OUT + 3, S_T0))
    e("L_end:")
    e("s_endpgm")

def kd(name, vgpr, sgpr):
    return """.amdhsa_kernel %s
  .amdhsa_next_free_vgpr %d
  .amdhsa_next_free_sgpr %d
  .amdhsa_accum_offset %d
  .amdhsa_group_segment_fixed_size 0
  .amdhsa_kernarg_size 104
  .amdhsa_user_sgpr_count 2
  .amdhsa_user_sgpr_kernarg_segment_ptr 1
  .amdhsa_system_sgpr_workgroup_id_x 1
  .amdhsa_float_denorm_mode_32 3
.end_amdhsa_kernel
""" % (name, vgpr, sgpr, (vgpr + 3) // 4 * 4)

k1()
txt = HEADER + "\n".join(L) + "\n" + '.section .rodata,"a"\n.p2align 6\n' + kd(KN, 256, 102)
open(OUT, "w").write(txt)
print("wrote", OUT, len(L), "lines")
```

```python
import sys, os

NAME = "concat_heads__mha_block_cached__gqa_block_cached__decode"
KN = NAME + "_kernel"
OUT = sys.argv[1] if len(sys.argv) > 1 else "cdna_kernels/%s.s" % NAME
NT = " nt"
NTW = " nt"
D = int(os.environ.get("D", "8"))
G = int(os.environ.get("G", "4"))
WT = int(os.environ.get("W", str(D - G)))
assert WT <= D - G
STAMP = os.environ.get("STAMP", "") == "1"
NRED = 32
EARLY = os.environ.get("EARLY", "") == "1"
BLK = int(os.environ.get("BLK", "8"))
NB = 64 // BLK
NPRO = 4 if os.environ.get("EARLY", "") == "1" else D
LGB = BLK.bit_length() - 1

HEADER = """; Kernarg layout for this problem (104 bytes, ptrs only, base s[0:1]):
; @launch grid=(256,1,1) block=(512,1,1) lds=28672
.amdgcn_target "amdgcn-amd-amdhsa--gfx950"
.text
"""

L = []
def e(s=""):
    L.append("    " + s if s and not s.endswith(":") else s)

DPP = " row_mask:0xf bank_mask:0xf"

S_W = 3; S_H64 = 4; S_SPLIT = 5; S_B = 6; S_H = 7
S_PX = 8; S_PK = 10; S_PV = 12; S_PWQ = 14
S_POUT = 8; S_PDBG = 10
S_PWO = 38
SRD_PF = 40
SRD_WQ = 44
SRD_OUT = 44
SRD_WO = 48
SRD_DBG = 48
SRD_X = 52
SRD_WS = 56
S_KB = 60
S_VB = 62
S_C4 = 64
S_LOG2E = 65; S_SCALE = 66; S_T0 = 67; S_T1 = 68; S_CNT = 69
S_MASK = 70
S_R0 = 16
S_BN = 20
S_C8 = 21; S_C12 = 22; S_T2 = 23

V_LANE = 1
V_OFF16 = 2
V_WQOFF = 3
V_X = 4
V_Q = 8
V_SC = 12
V_SCN = 16
V_P = 20
V_T = 24
V_ACC = 32
V_M = 40
V_L = 41
V_A0 = 42
V_OP = 44
V_RING = 64
NOUNP = D > 8
V_ML = 128 if NOUNP else 96
V_U = 112
V_WQ = 128
V_WO = 192

LDS_Q = 0
LDS_O = 4096
LDS_ML = 8192
LDS_ROLE = 8320
LDS_Y = 8448
LDS_R = 24832

STR = [24, 26, 28, 30, 32, 34, 12, 14]
def stamp(k):
    if STAMP:
        e("s_memrealtime s[%d:%d]" % (STR[k], STR[k] + 1))
        e("s_waitcnt lgkmcnt(0)")

def unpack(dst_lo, dst_hi, src):
    e("v_lshlrev_b32 v%d, 16, v%d" % (dst_lo, src))
    e("v_and_b32 v%d, 0xffff0000, v%d" % (dst_hi, src))

def fma_tile(acc, tile, vsrc, lane):
    for r in range(4):
        unpack(V_T + 2 * r, V_T + 2 * r + 1, tile + r)
    for d in range(8):
        e("v_fmac_f32_dpp v%d, v%d, v%d row_newbcast:%d%s" % (acc + d, vsrc, V_T + d, lane, DPP))

def row_reduce8(acc):
    e("s_nop 1")
    for d in range(4):
        e("v_permlane32_swap_b32 v%d, v%d" % (acc + d, acc + d + 4))
    e("s_nop 1")
    for d in range(4):
        e("v_add_f32 v%d, v%d, v%d" % (acc + d, acc + d, acc + d + 4))
    e("s_nop 1")
    for d in range(2):
        e("v_permlane16_swap_b32 v%d, v%d" % (acc + d, acc + d + 2))
    e("s_nop 1")
    for d in range(2):
        e("v_add_f32 v%d, v%d, v%d" % (acc + d, acc + d, acc + d + 2))

def wave_allreduce(op, v):
    for r in (8, 4, 2, 1):
        e("s_nop 1")
        e("%s_dpp v%d, v%d, v%d row_ror:%d%s" % (op, v, v, v, r, DPP))
    e("s_nop 1")
    for i in range(4):
        e("v_readlane_b32 s%d, v%d, %d" % (S_R0 + i, v, 16 * i))
    e("s_nop 1")
    e("v_mov_b32 v%d, s%d" % (v, S_R0))
    for i in range(1, 4):
        e("%s v%d, s%d, v%d" % (op, v, S_R0 + i, v))

def ld_tile(dst, srd, i, voff, nt=""):
    soff = ["0", "s%d" % S_C4, "s%d" % S_C8, "s%d" % S_C12][i // 4]
    e("buffer_load_dwordx4 v[%d:%d], v%d, s[%d:%d], %s offen offset:%d%s" %
      (dst, dst + 3, voff, srd, srd + 3, soff, (i % 4) * 1024, nt))

def set_block():
    e("s_and_b32 s%d, s%d, %d" % (S_T0, S_BN, NB - 1))
    e("s_lshl_b32 s%d, s%d, %d" % (S_T0, S_T0, 13 + LGB))
    e("s_cmp_lt_u32 s%d, %d" % (S_BN, NB))
    e("s_cselect_b64 s[%d:%d], s[%d:%d], s[%d:%d]" % (SRD_PF, SRD_PF + 1, S_KB, S_KB + 1, S_VB, S_VB + 1))
    e("s_add_u32 s%d, s%d, s%d" % (SRD_PF, SRD_PF, S_T0))
    e("s_addc_u32 s%d, s%d, 0" % (SRD_PF + 1, SRD_PF + 1))
    e("s_cmp_lt_u32 s%d, %d" % (S_BN, 2 * NB))
    e("s_cselect_b32 s%d, %d, 0" % (SRD_PF + 2, BLK * 1024))
    e("s_add_u32 s%d, s%d, 1" % (S_BN, S_BN))

def k_body(first):
    if EARLY:
        for g in range(4):
            n0 = 4 * g
            set_block()
            e("s_waitcnt vmcnt(0)")
            if first:
                for a in range(4):
                    ld_tile(V_WO + 4 * (n0 + a), SRD_WO, n0 + a, V_OFF16, NTW)
            for a in range(4):
                ld_tile(V_RING + 4 * ((n0 + 4 + a) % 8), SRD_PF, a, V_OFF16, NT)
            for r in range(4):
                for a in range(4):
                    t = V_RING + 4 * ((n0 + a) % 8) + r
                    if r == 0:
                        e("v_dot2_f32_bf16 v%d, v%d, v%d, 0" % (V_P + a, t, V_Q + r))
                    else:
                        e("v_dot2_f32_bf16 v%d, v%d, v%d, v%d" % (V_P + a, t, V_Q + r, V_P + a))
            for ror in (8, 4, 2, 1):
                for a in range(4):
                    e("v_add_f32_dpp v%d, v%d, v%d row_ror:%d%s" % (V_P + a, V_P + a, V_P + a, ror, DPP))
            for a in range(4):
                i = n0 + a
                e("v_cndmask_b32 v%d, v%d, v%d, s[%d:%d]" % (V_SCN, V_SCN, V_P + a, S_MASK + 2 * i, S_MASK + 2 * i + 1))
    else:
        k_body_std(first)
    k_tail()

def k_body_std(first):
    NG = 16 // G
    for g in range(NG):
        n0 = G * g
        if first:
            order = [("K", n) for n in range(D)]
            for gg in range(g):
                order += [("W", G * gg + a) for a in range(G)] + [("K", G * gg + D + a) for a in range(G)]
            idx = order.index(("K", n0 + G - 1))
            w = len(order) - 1 - idx
            lastk = D - 1 + G * g
            cut = lastk - WT
            if cut >= 0:
                w = min(w, len(order) - 1 - order.index(("K", cut)))
        else:
            w = WT
        e("s_waitcnt vmcnt(%d)" % w)
        for r in range(4):
            for a in range(G):
                t = V_RING + 4 * ((n0 + a) % D) + r
                if r == 0:
                    e("v_dot2_f32_bf16 v%d, v%d, v%d, 0" % (V_P + a, t, V_Q + r))
                else:
                    e("v_dot2_f32_bf16 v%d, v%d, v%d, v%d" % (V_P + a, t, V_Q + r, V_P + a))
        if first:
            for a in range(G):
                ld_tile(V_WO + 4 * (n0 + a), SRD_WO, n0 + a, V_OFF16, NTW)
        if (n0 + D) % BLK == 0:
            set_block()
        for a in range(G):
            ld_tile(V_RING + 4 * ((n0 + a) % D), SRD_PF, (n0 + a + D) % BLK, V_OFF16, NT)
        for ror in (8, 4, 2, 1):
            if G == 2:
                e("s_nop 0")
            for a in range(G):
                e("v_add_f32_dpp v%d, v%d, v%d row_ror:%d%s" % (V_P + a, V_P + a, V_P + a, ror, DPP))
        for a in range(G):
            i = n0 + a
            e("v_cndmask_b32 v%d, v%d, v%d, s[%d:%d]" % (V_SCN, V_SCN, V_P + a, S_MASK + 2 * i, S_MASK + 2 * i + 1))

def k_tail():
    e("v_mov_b32 v%d, v%d" % (V_SC, V_SC + 1))
    e("v_mov_b32 v%d, v%d" % (V_SC + 1, V_SC + 2))
    e("v_mov_b32 v%d, v%d" % (V_SC + 2, V_SC + 3))
    e("v_cvt_pk_bf16_f32 v%d, v%d, v%d" % (V_T, V_SCN, V_SCN))
    e("v_lshlrev_b32 v%d, 16, v%d" % (V_T, V_T))
    e("v_mul_f32 v%d, s%d, v%d" % (V_T, S_SCALE, V_T))
    e("v_cvt_pk_bf16_f32 v%d, v%d, v%d" % (V_T, V_T, V_T))
    e("v_lshlrev_b32 v%d, 16, v%d" % (V_SC + 3, V_T))

def k1():
    e(".globl %s" % KN)
    e(".p2align 8")
    e(".type %s,@function" % KN)
    e("%s:" % KN)
    e("s_cmp_ge_u32 s2, 256")
    e("s_cbranch_scc1 L_end")
    e("s_load_dwordx16 s[16:31], s[0:1], 0")
    e("s_load_dwordx4 s[32:35], s[0:1], 64")
    e("s_load_dwordx2 s[36:37], s[0:1], 96")
    e("v_lshrrev_b32 v5, 6, v0")
    e("v_and_b32 v%d, 63, v0" % V_LANE)
    e("s_nop 0")
    e("v_readfirstlane_b32 s%d, v5" % S_W)
    if os.environ.get("BADMAP"):
        e("s_lshr_b32 s%d, s2, 2" % S_H64)
        e("s_and_b32 s%d, s2, 3" % S_SPLIT)
        e("s_lshl_b32 s2, s%d, 6" % S_SPLIT)
        e("s_add_u32 s2, s2, s%d" % S_H64)
    elif os.environ.get("MAP2"):
        e("s_and_b32 s%d, s2, 7" % S_H64)
        e("s_lshl_b32 s%d, s%d, 3" % (S_H64, S_H64))
        e("s_bfe_u32 s%d, s2, 0x30003" % S_SPLIT)
        e("s_add_u32 s%d, s%d, s%d" % (S_H64, S_H64, S_SPLIT))
        e("s_lshr_b32 s%d, s2, 6" % S_SPLIT)
        e("s_mov_b32 s%d, s2" % S_T2)
        e("s_lshl_b32 s2, s%d, 6" % S_SPLIT)
        e("s_add_u32 s2, s2, s%d" % S_H64)
    else:
        e("s_and_b32 s%d, s2, 63" % S_H64)
        e("s_lshr_b32 s%d, s2, 6" % S_SPLIT)
    e("s_lshr_b32 s%d, s%d, 5" % (S_B, S_H64))
    e("s_and_b32 s%d, s%d, 31" % (S_H, S_H64))
    e("v_lshlrev_b32 v%d, 4, v%d" % (V_OFF16, V_LANE))
    e("v_lshrrev_b32 v5, 4, v%d" % V_LANE)
    e("v_and_b32 v6, 15, v%d" % V_LANE)
    e("v_lshlrev_b32 v7, 13, v5")
    e("v_lshl_add_u32 v%d, v6, 4, v7" % V_WQOFF)
    e("v_lshl_add_u32 v7, v6, 2, v5")
    e("v_lshlrev_b32 v7, 1, v7")
    e("s_mov_b32 s%d, 4096" % S_C4)
    e("s_mov_b32 s%d, 0x3fb8aa3b" % S_LOG2E)
    e("s_mov_b32 s%d, 0x3db504f3" % S_SCALE)
    e("s_waitcnt lgkmcnt(0)")
    e("s_cmp_eq_u32 s%d, 0" % S_B)
    e("s_cselect_b64 s[%d:%d], s[16:17], s[26:27]" % (S_PX, S_PX + 1))
    e("s_cselect_b64 s[%d:%d], s[18:19], s[28:29]" % (S_PK, S_PK + 1))
    e("s_cselect_b64 s[%d:%d], s[20:21], s[30:31]" % (S_PV, S_PV + 1))
    e("s_cselect_b64 s[%d:%d], s[22:23], s[32:33]" % (S_PWQ, S_PWQ + 1))
    e("s_cselect_b64 s[%d:%d], s[24:25], s[34:35]" % (S_PWO, S_PWO + 1))
    stamp(0)
    if STAMP:
        e("s_mov_b64 s[34:35], 0")
    e("s_mov_b32 s%d, 8192" % S_C8)
    e("s_mov_b32 s%d, 12288" % S_C12)
    e("s_mov_b32 s%d, 0" % S_BN)
    e("s_lshl_b32 s%d, s%d, 7" % (S_T0, S_W))
    e("s_add_u32 s%d, s%d, s%d" % (SRD_X, S_PX, S_T0))
    e("s_addc_u32 s%d, s%d, 0" % (SRD_X + 1, S_PX + 1))
    e("s_mov_b32 s%d, 128" % (SRD_X + 2))
    e("s_mov_b32 s%d, 0x00020000" % (SRD_X + 3))
    e("s_lshl_b32 s%d, s%d, 8" % (S_T0, S_H))
    e("s_lshl_b32 s%d, s%d, 19" % (S_T1, S_W))
    e("s_add_u32 s%d, s%d, s%d" % (S_T0, S_T0, S_T1))
    e("s_add_u32 s%d, s%d, s%d" % (SRD_WQ, S_PWQ, S_T0))
    e("s_addc_u32 s%d, s%d, 0" % (SRD_WQ + 1, S_PWQ + 1))
    e("s_mov_b32 s%d, %d" % (SRD_WQ + 2, 63 * 8192 + 256))
    e("s_mov_b32 s%d, 0x00020000" % (SRD_WQ + 3))
    e("buffer_load_ushort v%d, v7, s[%d:%d], 0 offen" % (V_X, SRD_X, SRD_X + 3))
    e("s_mov_b32 s%d, 0" % S_T0)
    for i in range(16):
        e("buffer_load_dwordx4 v[%d:%d], v%d, s[%d:%d], s%d offen%s" %
          (V_WQ + 4 * i, V_WQ + 4 * i + 3, V_WQOFF, SRD_WQ, SRD_WQ + 3, S_T0, NTW))
        if i != 15:
            e("s_add_u32 s%d, s%d, 32768" % (S_T0, S_T0))
    e("s_lshl_b32 s%d, s%d, 21" % (S_T0, S_H))
    e("s_lshl_b32 s%d, s%d, 19" % (S_T1, S_SPLIT))
    e("s_add_u32 s%d, s%d, s%d" % (S_T0, S_T0, S_T1))
    e("s_lshl_b32 s%d, s%d, %d" % (S_T1, S_W, 10 + LGB))
    e("s_add_u32 s%d, s%d, s%d" % (S_T0, S_T0, S_T1))
    e("s_add_u32 s%d, s%d, s%d" % (S_KB, S_PK, S_T0))
    e("s_addc_u32 s%d, s%d, 0" % (S_KB + 1, S_PK + 1))
    e("s_add_u32 s%d, s%d, s%d" % (S_VB, S_PV, S_T0))
    e("s_addc_u32 s%d, s%d, 0" % (S_VB + 1, S_PV + 1))
    e("s_mov_b32 s%d, 0x00020000" % (SRD_PF + 3))
    e("s_barrier")
    for n in range(NPRO):
        if n % BLK == 0:
            set_block()
        ld_tile(V_RING + 4 * n, SRD_PF, n % BLK, V_OFF16, NT)
    e("s_load_dwordx4 s[8:11], s[0:1], 80")
    e("s_lshl_b32 s%d, s%d, 17" % (S_T0, S_H))
    e("s_lshl_b32 s%d, s%d, 14" % (S_T1, S_W))
    e("s_add_u32 s%d, s%d, s%d" % (S_T0, S_T0, S_T1))
    e("s_add_u32 s%d, s%d, s%d" % (SRD_WO, S_PWO, S_T0))
    e("s_addc_u32 s%d, s%d, 0" % (SRD_WO + 1, S_PWO + 1))
    e("s_mov_b32 s%d, 16384" % (SRD_WO + 2))
    e("s_mov_b32 s%d, 0x00020000" % (SRD_WO + 3))
    e("s_mov_b32 s%d, s36" % SRD_WS)
    e("s_mov_b32 s%d, s37" % (SRD_WS + 1))
    e("s_mov_b32 s%d, %d" % (SRD_WS + 2, 256 * 2048 + 256 * 8))
    e("s_mov_b32 s%d, 0x00020000" % (SRD_WS + 3))
    for i in range(16):
        m = (0x00010001 << i) & 0xffffffff
        e("s_mov_b32 s%d, 0x%08x" % (S_MASK + 2 * i, m))
        e("s_mov_b32 s%d, 0x%08x" % (S_MASK + 2 * i + 1, m))
    for d in range(8):
        e("v_mov_b32 v%d, 0" % (V_ACC + d))
    e("s_waitcnt vmcnt(%d)" % (NPRO + 15))
    e("v_lshlrev_b32 v%d, 16, v%d" % (V_X, V_X))
    e("s_nop 1")
    for i in range(16):
        e("s_waitcnt vmcnt(%d)" % (NPRO + 15 - i))
        fma_tile(V_ACC, V_WQ + 4 * i, V_X, i)
    row_reduce8(V_ACC)
    e("v_lshrrev_b32 v5, 4, v%d" % V_LANE)
    e("v_and_b32 v6, 15, v%d" % V_LANE)
    e("v_lshlrev_b32 v7, 3, v5")
    e("v_lshl_add_u32 v7, v6, 5, v7")
    e("s_lshl_b32 s%d, s%d, 9" % (S_T0, S_W))
    e("v_add_u32 v%d, s%d, v7" % (V_A0, S_T0))
    e("ds_write_b64 v%d, v[%d:%d] offset:%d" % (V_A0, V_ACC, V_ACC + 1, LDS_Q))
    e("s_waitcnt lgkmcnt(0)")
    e("s_barrier")
    e("v_lshlrev_b32 v7, 5, v6")
    for w in range(8):
        e("ds_read_b128 v[%d:%d], v7 offset:%d" % (V_WQ + 8 * w, V_WQ + 8 * w + 3, LDS_Q + w * 512))
        e("ds_read_b128 v[%d:%d], v7 offset:%d" % (V_WQ + 8 * w + 4, V_WQ + 8 * w + 7, LDS_Q + w * 512 + 16))
    e("s_waitcnt lgkmcnt(0)")
    for w in range(1, 8):
        for d in range(8):
            e("v_add_f32 v%d, v%d, v%d" % (V_WQ + d, V_WQ + d, V_WQ + 8 * w + d))
    for r in range(4):
        e("v_cvt_pk_bf16_f32 v%d, v%d, v%d" % (V_Q + r, V_WQ + 2 * r, V_WQ + 2 * r + 1))
    stamp(1)
    e("s_nop 1")
    k_body(True)
    e("s_mov_b32 s%d, 0" % S_CNT)
    e("L_kloop:")
    k_body(False)
    e("s_add_u32 s%d, s%d, 1" % (S_CNT, S_CNT))
    e("s_cmp_lt_u32 s%d, 3" % S_CNT)
    e("s_cbranch_scc1 L_kloop")
    stamp(2)
    e("v_max_f32 v%d, v%d, v%d" % (V_M, V_SC, V_SC + 1))
    e("v_max3_f32 v%d, v%d, v%d, v%d" % (V_M, V_M, V_SC + 2, V_SC + 3))
    wave_allreduce("v_max_f32", V_M)
    for t in range(4):
        e("v_sub_f32 v%d, v%d, v%d" % (V_SC + t, V_SC + t, V_M))
    for t in range(4):
        e("v_mul_f32 v%d, s%d, v%d" % (V_SC + t, S_LOG2E, V_SC + t))
    for t in range(4):
        e("v_exp_f32 v%d, v%d" % (V_SC + t, V_SC + t))
    e("s_nop 0")
    e("v_add_f32 v%d, v%d, v%d" % (V_L, V_SC, V_SC + 1))
    e("v_add_f32 v%d, v%d, v%d" % (V_L, V_L, V_SC + 2))
    e("v_add_f32 v%d, v%d, v%d" % (V_L, V_L, V_SC + 3))
    wave_allreduce("v_add_f32", V_L)
    e("s_lshl_b32 s%d, s%d, 3" % (S_T0, S_W))
    e("v_mov_b32 v5, s%d" % S_T0)
    e("s_mov_b64 exec, 1")
    e("ds_write_b64 v5, v[%d:%d] offset:%d" % (V_M, V_L, LDS_ML))
    e("s_mov_b64 exec, -1")
    for d in range(8):
        e("v_mov_b32 v%d, 0" % (V_ACC + d))
    if not NOUNP:
        e("s_waitcnt vmcnt(%d)" % NPRO)
        for r in range(16):
            for k in range(4):
                unpack(V_U + 8 * r + 2 * k, V_U + 8 * r + 2 * k + 1, V_WO + 4 * r + k)
    e("s_mov_b32 s%d, 0" % S_CNT)
    e("L_vloop:")
    for g in range(16 // G):
        n0 = G * g
        if EARLY:
            set_block()
            e("s_waitcnt vmcnt(0)")
            for a in range(4):
                ld_tile(V_RING + 4 * ((n0 + 4 + a) % 8), SRD_PF, a, V_OFF16, NT)
            for a in range(4):
                fma_tile(V_ACC, V_RING + 4 * ((n0 + a) % 8), V_SC, n0 + a)
            continue
        e("s_waitcnt vmcnt(%d)" % WT)
        for a in range(G):
            fma_tile(V_ACC, V_RING + 4 * ((n0 + a) % D), V_SC, n0 + a)
        if (n0 + D) % BLK == 0:
            set_block()
        for a in range(G):
            ld_tile(V_RING + 4 * ((n0 + a) % D), SRD_PF, (n0 + a + D) % BLK, V_OFF16, NT)
    e("v_mov_b32 v%d, v%d" % (V_SC, V_SC + 1))
    e("v_mov_b32 v%d, v%d" % (V_SC + 1, V_SC + 2))
    e("v_mov_b32 v%d, v%d" % (V_SC + 2, V_SC + 3))
    e("s_add_u32 s%d, s%d, 1" % (S_CNT, S_CNT))
    e("s_cmp_lt_u32 s%d, 4" % S_CNT)
    e("s_cbranch_scc1 L_vloop")
    stamp(3)
    row_reduce8(V_ACC)
    e("ds_write_b64 v%d, v[%d:%d] offset:%d" % (V_A0, V_ACC, V_ACC + 1, LDS_O))
    e("v_mov_b32 v5, 0")
    e("s_lshl_b32 s%d, s%d, 6" % (S_T0, S_W))
    e("v_lshl_add_u32 v7, v6, 2, s%d" % S_T0)
    e("s_waitcnt lgkmcnt(0)")
    e("s_barrier")
    ML = V_ML
    OP = V_OP
    for i in range(4):
        e("ds_read_b128 v[%d:%d], v5 offset:%d" % (ML + 4 * i, ML + 4 * i + 3, LDS_ML + 16 * i))
    for w in range(8):
        e("ds_read_b32 v%d, v7 offset:%d" % (OP + w, LDS_O + 512 * w))
    e("s_waitcnt lgkmcnt(8)")
    e("v_max3_f32 v%d, v%d, v%d, v%d" % (V_M, ML + 0, ML + 2, ML + 4))
    e("v_max3_f32 v%d, v%d, v%d, v%d" % (V_M, V_M, ML + 6, ML + 8))
    e("v_max3_f32 v%d, v%d, v%d, v%d" % (V_M, V_M, ML + 10, ML + 12))
    e("v_max_f32 v%d, v%d, v%d" % (V_M, V_M, ML + 14))
    for w in range(8):
        e("v_sub_f32 v%d, v%d, v%d" % (ML + 2 * w, ML + 2 * w, V_M))
    for w in range(8):
        e("v_mul_f32 v%d, s%d, v%d" % (ML + 2 * w, S_LOG2E, ML + 2 * w))
    for w in range(8):
        e("v_exp_f32 v%d, v%d" % (ML + 2 * w, ML + 2 * w))
    e("s_waitcnt lgkmcnt(0)")
    VO = V_SC
    e("v_mul_f32 v%d, v%d, v%d" % (VO, ML, OP))
    for w in range(1, 8):
        e("v_fmac_f32 v%d, v%d, v%d" % (VO, ML + 2 * w, OP + w))
    e("v_mul_f32 v%d, v%d, v%d" % (V_L, ML, ML + 1))
    for w in range(1, 8):
        e("v_fmac_f32 v%d, v%d, v%d" % (V_L, ML + 2 * w, ML + 2 * w + 1))
    if NOUNP:
        for d in range(8):
            e("v_mov_b32 v%d, 0" % (V_ACC + d))
        for r in range(16):
            fma_tile(V_ACC, V_WO + 4 * r, VO, r)
    else:
      for r in range(16):
        for d in range(8):
            if r == 0:
                e("v_mul_f32_dpp v%d, v%d, v%d row_newbcast:%d%s" % (V_ACC + d, VO, V_U + 8 * r + d, r, DPP))
            else:
                e("v_fmac_f32_dpp v%d, v%d, v%d row_newbcast:%d%s" % (V_ACC + d, VO, V_U + 8 * r + d, r, DPP))
    e("s_lshl_b32 s%d, s%d, 11" % (S_T0, S_W))
    e("v_lshl_add_u32 v5, v%d, 5, s%d" % (V_LANE, S_T0))
    e("ds_write_b128 v5, v[%d:%d] offset:%d" % (V_ACC, V_ACC + 3, LDS_Y))
    e("ds_write_b128 v5, v[%d:%d] offset:%d" % (V_ACC + 4, V_ACC + 7, LDS_Y + 16))
    e("v_lshlrev_b32 v5, 4, v0")
    e("s_waitcnt vmcnt(0) lgkmcnt(0)")
    e("s_barrier")
    e("s_cmp_ge_u32 s%d, 2" % S_W)
    e("s_cbranch_scc1 L_stored")
    YR = V_RING
    for w in range(8):
        e("ds_read_b128 v[%d:%d], v5 offset:%d" % (YR + 4 * w, YR + 4 * w + 3, LDS_Y + 2048 * w))
    e("s_lshl_b32 s%d, s2, 11" % S_T0)
    e("s_lshl_b32 s%d, s2, 3" % S_T1)
    e("s_add_u32 s%d, s%d, %d" % (S_T1, S_T1, 256 * 2048))
    e("s_waitcnt lgkmcnt(0)")
    for w in range(1, 8):
        for d in range(4):
            e("v_add_f32 v%d, v%d, v%d" % (YR + d, YR + d, YR + 4 * w + d))
    e("buffer_store_dwordx4 v[%d:%d], v5, s[%d:%d], s%d offen sc1" % (YR, YR + 3, SRD_WS, SRD_WS + 3, S_T0))
    e("s_cmp_lg_u32 s%d, 0" % S_W)
    e("s_cbranch_scc1 L_stored")
    e("s_mov_b64 exec, 1")
    e("buffer_store_dwordx2 v[%d:%d], v5, s[%d:%d], s%d offen sc1" % (V_M, V_L, SRD_WS, SRD_WS + 3, S_T1))
    e("s_mov_b64 exec, -1")
    e("L_stored:")
    e("s_mov_b32 s%d, s%d" % (SRD_DBG, S_PDBG))
    e("s_mov_b32 s%d, s%d" % (SRD_DBG + 1, S_PDBG + 1))
    e("s_mov_b32 s%d, 256" % (SRD_DBG + 2))
    e("s_mov_b32 s%d, 0x00020000" % (SRD_DBG + 3))
    e("s_mov_b32 s%d, s%d" % (SRD_OUT, S_POUT))
    e("s_mov_b32 s%d, s%d" % (SRD_OUT + 1, S_POUT + 1))
    e("s_mov_b32 s%d, 2048" % (SRD_OUT + 2))
    e("s_mov_b32 s%d, 0x00020000" % (SRD_OUT + 3))
    e("v_mov_b32 v5, 0")
    e("s_waitcnt vmcnt(0)")
    e("s_barrier")
    stamp(4)
    e("s_cmp_lg_u32 s%d, 0" % S_W)
    e("s_cbranch_scc1 L_wait_role")
    if STAMP:
        e("s_mov_b32 s%d, %d" % (SRD_WS + 2, 2 << 20))
        e("s_lshl_b32 s%d, s2, 6" % S_T0)
        e("s_add_u32 s%d, s%d, %d" % (S_T0, S_T0, 1 << 20))
        e("s_mov_b64 exec, 1")
        for k in range(8):
            e("v_mov_b32 v8, s%d" % (STR[k]))
            e("v_mov_b32 v9, s%d" % (STR[k] + 1))
            e("buffer_store_dwordx2 v[8:9], v5, s[%d:%d], s%d offen offset:%d" % (SRD_WS, SRD_WS + 3, S_T0, 8 * k))
            e("s_nop 2")
        e("s_mov_b64 exec, -1")
    e("v_mov_b32 v7, 1")
    e("s_mov_b64 exec, 1")
    e("buffer_atomic_add v7, v5, s[%d:%d], 0 offen sc0" % (SRD_DBG, SRD_DBG + 3))
    e("s_waitcnt vmcnt(0)")
    e("s_mov_b64 exec, -1")
    e("v_readfirstlane_b32 s%d, v7" % S_T0)
    e("s_nop 3")
    e("s_cmp_lt_u32 s%d, %d" % (S_T0, 256 - NRED))
    e("s_cbranch_scc1 L_publish")
    e("s_cmp_eq_u32 s%d, 255" % S_T0)
    e("s_cbranch_scc1 L_publish")
    e("s_mov_b32 s%d, 0" % S_CNT)
    e("L_poll:")
    e("s_mov_b64 exec, 1")
    e("buffer_load_dword v7, v5, s[%d:%d], 0 offen sc1" % (SRD_DBG, SRD_DBG + 3))
    e("s_waitcnt vmcnt(0)")
    e("s_mov_b64 exec, -1")
    e("v_readfirstlane_b32 s%d, v7" % S_T1)
    e("s_nop 3")
    e("s_cmp_ge_u32 s%d, 256" % S_T1)
    e("s_cbranch_scc1 L_publish")
    e("s_add_u32 s%d, s%d, 1" % (S_CNT, S_CNT))
    e("s_cmp_lt_u32 s%d, 0x100000" % S_CNT)
    e("s_cbranch_scc0 L_publish")
    e("s_sleep 1")
    e("s_branch L_poll")
    e("L_publish:")
    stamp(5)
    e("v_mov_b32 v7, s%d" % S_T0)
    e("ds_write_b32 v5, v7 offset:%d" % LDS_ROLE)
    e("s_waitcnt lgkmcnt(0)")
    e("L_wait_role:")
    e("s_barrier")
    e("s_cmp_ge_u32 s%d, 4" % S_W)
    e("s_cbranch_scc1 L_end")
    e("ds_read_b32 v7, v5 offset:%d" % LDS_ROLE)
    e("s_waitcnt lgkmcnt(0)")
    e("v_readfirstlane_b32 s%d, v7" % S_T0)
    e("s_nop 3")
    e("s_cmp_lt_u32 s%d, %d" % (S_T0, 256 - NRED))
    e("s_cbranch_scc1 L_end")
    e("s_sub_u32 s%d, s%d, %d" % (S_T0, S_T0, 256 - NRED))
    e("s_lshr_b32 s%d, s%d, 4" % (S_B, S_T0))
    e("s_and_b32 s%d, s%d, 15" % (S_H, S_T0))
    e("v_lshrrev_b32 v1, 3, v0")
    e("v_and_b32 v2, 7, v0")
    e("s_lshl_b32 s%d, s%d, 5" % (S_T0, S_B))
    e("v_add_u32 v3, s%d, v1" % S_T0)
    e("s_lshl_b32 s%d, s%d, 7" % (S_T1, S_H))
    e("v_lshl_add_u32 v4, v2, 4, s%d" % S_T1)
    e("v_lshl_add_u32 v4, v3, 11, v4")
    e("v_lshlrev_b32 v5, 3, v3")
    for s in range(4):
        e("s_mov_b32 s%d, %d" % (16 + s, 256 * 2048 + s * 64 * 8))
        e("s_mov_b32 s%d, %d" % (20 + s, s * 64 * 2048))
    for s in range(4):
        e("buffer_load_dwordx2 v[%d:%d], v5, s[%d:%d], s%d offen sc1" % (8 + 2 * s, 9 + 2 * s, SRD_WS, SRD_WS + 3, 16 + s))
    for s in range(4):
        e("buffer_load_dwordx4 v[%d:%d], v4, s[%d:%d], s%d offen sc1" % (16 + 4 * s, 19 + 4 * s, SRD_WS, SRD_WS + 3, 20 + s))
    e("s_waitcnt vmcnt(4)")
    e("v_max3_f32 v6, v8, v10, v12")
    e("v_max_f32 v6, v6, v14")
    for s in range(4):
        e("v_sub_f32 v%d, v%d, v6" % (8 + 2 * s, 8 + 2 * s))
    for s in range(4):
        e("v_mul_f32 v%d, s%d, v%d" % (8 + 2 * s, S_LOG2E, 8 + 2 * s))
    for s in range(4):
        e("v_exp_f32 v%d, v%d" % (8 + 2 * s, 8 + 2 * s))
    e("s_nop 0")
    e("v_mul_f32 v7, v8, v9")
    for s in range(1, 4):
        e("v_fmac_f32 v7, v%d, v%d" % (8 + 2 * s, 9 + 2 * s))
    e("v_rcp_f32 v7, v7")
    e("s_nop 0")
    for s in range(4):
        e("v_mul_f32 v%d, v%d, v7" % (8 + 2 * s, 8 + 2 * s))
    e("s_waitcnt vmcnt(0)")
    stamp(6)
    for d in range(4):
        e("v_mul_f32 v%d, v8, v%d" % (32 + d, 16 + d))
    for s in range(1, 4):
        for d in range(4):
            e("v_fmac_f32 v%d, v%d, v%d" % (32 + d, 8 + 2 * s, 16 + 4 * s + d))
    e("s_nop 1")
    for d in range(4):
        e("v_add_f32_dpp v%d, v%d, v%d row_ror:8%s" % (32 + d, 32 + d, 32 + d, DPP))
    e("v_lshrrev_b32 v6, 4, v0")
    e("v_lshlrev_b32 v6, 7, v6")
    e("v_lshl_add_u32 v6, v2, 4, v6")
    e("ds_write_b128 v6, v[32:35] offset:%d" % LDS_R)
    e("s_waitcnt lgkmcnt(0)")
    e("s_barrier")
    e("s_cmp_lg_u32 s%d, 0" % S_W)
    e("s_cbranch_scc1 L_end")
    e("v_lshlrev_b32 v6, 3, v0")
    e("v_lshlrev_b32 v7, 2, v0")
    e("s_mov_b64 exec, 0xffff")
    for r in range(16):
        e("ds_read_b64 v[%d:%d], v6 offset:%d" % (8 + 2 * r, 9 + 2 * r, LDS_R + 128 * r))
    e("s_lshl_b32 s%d, s%d, 10" % (S_T0, S_B))
    e("s_lshl_b32 s%d, s%d, 6" % (S_T1, S_H))
    e("s_add_u32 s%d, s%d, s%d" % (S_T0, S_T0, S_T1))
    e("s_waitcnt lgkmcnt(0)")
    for r in range(1, 16):
        e("v_add_f32 v8, v8, v%d" % (8 + 2 * r))
        e("v_add_f32 v9, v9, v%d" % (9 + 2 * r))
    e("v_cvt_pk_bf16_f32 v8, v8, v9")
    e("buffer_store_dword v8, v7, s[%d:%d], s%d offen" % (SRD_OUT, SRD_OUT + 3, S_T0))
    if STAMP:
        e("s_waitcnt vmcnt(0)")
        stamp(7)
        e("s_lshl_b32 s%d, s2, 6" % S_T0)
        e("s_add_u32 s%d, s%d, %d" % (S_T0, S_T0, 1 << 20))
        e("s_mov_b64 exec, 1")
        e("v_mov_b32 v5, 0")
        for k in (5, 6, 7):
            e("v_mov_b32 v8, s%d" % (STR[k]))
            e("v_mov_b32 v9, s%d" % (STR[k] + 1))
            e("buffer_store_dwordx2 v[8:9], v5, s[%d:%d], s%d offen offset:%d" % (SRD_WS, SRD_WS + 3, S_T0, 8 * k))
            e("s_nop 2")
    e("L_end:")
    e("s_endpgm")

def kd(name, vgpr, sgpr):
    return """.amdhsa_kernel %s
  .amdhsa_next_free_vgpr %d
  .amdhsa_next_free_sgpr %d
  .amdhsa_accum_offset %d
  .amdhsa_group_segment_fixed_size 0
  .amdhsa_kernarg_size 104
  .amdhsa_user_sgpr_count 2
  .amdhsa_user_sgpr_kernarg_segment_ptr 1
  .amdhsa_system_sgpr_workgroup_id_x 1
  .amdhsa_float_denorm_mode_32 3
.end_amdhsa_kernel
""" % (name, vgpr, sgpr, (vgpr + 3) // 4 * 4)

k1()
txt = HEADER + "\n".join(L) + "\n" + '.section .rodata,"a"\n.p2align 6\n' + kd(KN, 256, 102)
open(OUT, "w").write(txt)
print("wrote", OUT, len(L), "lines")
```

```python
import sys, os

NAME = "concat_heads__mha_block_cached__gqa_block_cached__decode"
KN = NAME + "_kernel"
OUT = sys.argv[1] if len(sys.argv) > 1 else "cdna_kernels/%s.s" % NAME
NT = " nt"
NTW = " nt"
D = int(os.environ.get("D", "8"))
G = int(os.environ.get("G", "4"))
WT = int(os.environ.get("W", str(D - G)))
assert WT <= D - G
STAMP = os.environ.get("STAMP", "") == "1"
NRED = 32
EARLY = os.environ.get("EARLY", "") == "1"
BLK = int(os.environ.get("BLK", "8"))
NB = 64 // BLK
NPRO = int(os.environ.get("NPRO", "4")) if os.environ.get("EARLY", "") == "1" else D
LGB = BLK.bit_length() - 1

HEADER = """; Kernarg layout for this problem (104 bytes, ptrs only, base s[0:1]):
; @launch grid=(256,1,1) block=(512,1,1) lds=28672
.amdgcn_target "amdgcn-amd-amdhsa--gfx950"
.text
"""

L = []
def e(s=""):
    L.append("    " + s if s and not s.endswith(":") else s)

DPP = " row_mask:0xf bank_mask:0xf"

S_W = 3; S_H64 = 4; S_SPLIT = 5; S_B = 6; S_H = 7
S_PX = 8; S_PK = 10; S_PV = 12; S_PWQ = 14
S_POUT = 8; S_PDBG = 10
S_PWO = 38
SRD_PF = 40
SRD_WQ = 44
SRD_OUT = 44
SRD_WO = 48
SRD_DBG = 48
SRD_X = 52
SRD_WS = 56
S_KB = 60
S_VB = 62
S_C4 = 64
S_LOG2E = 65; S_SCALE = 66; S_T0 = 67; S_T1 = 68; S_CNT = 69
S_MASK = 70
S_R0 = 16
S_BN = 20
S_C8 = 21; S_C12 = 22; S_T2 = 23

V_LANE = 1
V_OFF16 = 2
V_WQOFF = 3
V_X = 4
V_Q = 8
V_SC = 12
V_SCN = 16
V_P = 20
V_T = 24
V_ACC = 32
V_M = 40
V_L = 41
V_A0 = 42
V_OP = 44
V_RING = 64
NOUNP = D > 8
V_ML = 128 if NOUNP else 96
V_U = 112
V_WQ = 128
V_WO = 192

LDS_Q = 0
LDS_O = 4096
LDS_ML = 8192
LDS_ROLE = 8320
LDS_Y = 8448
LDS_R = 24832

STR = [24, 26, 28, 30, 32, 34, 12, 14]
def stamp(k):
    if STAMP:
        e("s_memrealtime s[%d:%d]" % (STR[k], STR[k] + 1))
        e("s_waitcnt lgkmcnt(0)")

def unpack(dst_lo, dst_hi, src):
    e("v_lshlrev_b32 v%d, 16, v%d" % (dst_lo, src))
    e("v_and_b32 v%d, 0xffff0000, v%d" % (dst_hi, src))

def fma_tile(acc, tile, vsrc, lane):
    for r in range(4):
        unpack(V_T + 2 * r, V_T + 2 * r + 1, tile + r)
    for d in range(8):
        e("v_fmac_f32_dpp v%d, v%d, v%d row_newbcast:%d%s" % (acc + d, vsrc, V_T + d, lane, DPP))

def row_reduce8(acc):
    e("s_nop 1")
    for d in range(4):
        e("v_permlane32_swap_b32 v%d, v%d" % (acc + d, acc + d + 4))
    e("s_nop 1")
    for d in range(4):
        e("v_add_f32 v%d, v%d, v%d" % (acc + d, acc + d, acc + d + 4))
    e("s_nop 1")
    for d in range(2):
        e("v_permlane16_swap_b32 v%d, v%d" % (acc + d, acc + d + 2))
    e("s_nop 1")
    for d in range(2):
        e("v_add_f32 v%d, v%d, v%d" % (acc + d, acc + d, acc + d + 2))

def wave_allreduce(op, v):
    for r in (8, 4, 2, 1):
        e("s_nop 1")
        e("%s_dpp v%d, v%d, v%d row_ror:%d%s" % (op, v, v, v, r, DPP))
    e("s_nop 1")
    for i in range(4):
        e("v_readlane_b32 s%d, v%d, %d" % (S_R0 + i, v, 16 * i))
    e("s_nop 1")
    e("v_mov_b32 v%d, s%d" % (v, S_R0))
    for i in range(1, 4):
        e("%s v%d, s%d, v%d" % (op, v, S_R0 + i, v))

def ld_tile(dst, srd, i, voff, nt=""):
    soff = ["0", "s%d" % S_C4, "s%d" % S_C8, "s%d" % S_C12][i // 4]
    e("buffer_load_dwordx4 v[%d:%d], v%d, s[%d:%d], %s offen offset:%d%s" %
      (dst, dst + 3, voff, srd, srd + 3, soff, (i % 4) * 1024, nt))

def set_block():
    e("s_and_b32 s%d, s%d, %d" % (S_T0, S_BN, NB - 1))
    e("s_lshl_b32 s%d, s%d, %d" % (S_T0, S_T0, 13 + LGB))
    e("s_cmp_lt_u32 s%d, %d" % (S_BN, NB))
    e("s_cselect_b64 s[%d:%d], s[%d:%d], s[%d:%d]" % (SRD_PF, SRD_PF + 1, S_KB, S_KB + 1, S_VB, S_VB + 1))
    e("s_add_u32 s%d, s%d, s%d" % (SRD_PF, SRD_PF, S_T0))
    e("s_addc_u32 s%d, s%d, 0" % (SRD_PF + 1, SRD_PF + 1))
    e("s_cmp_lt_u32 s%d, %d" % (S_BN, 2 * NB))
    e("s_cselect_b32 s%d, %d, 0" % (SRD_PF + 2, BLK * 1024))
    e("s_add_u32 s%d, s%d, 1" % (S_BN, S_BN))

def k_body(first):
    if EARLY:
        for g in range(4):
            n0 = 4 * g
            if first:
                order = [("K", n) for n in range(NPRO)]
                for gg in range(g):
                    order += [("W", 4 * gg + a) for a in range(4)]
                    if 4 * gg + 4 >= NPRO:
                        order += [("K", 4 * gg + 4 + a) for a in range(4)]
                issue = n0 + 4 >= NPRO
                if issue:
                    set_block()
                    e("s_waitcnt vmcnt(0)")
                else:
                    e("s_waitcnt vmcnt(%d)" % (len(order) - 1 - order.index(("K", n0 + 3))))
                for a in range(4):
                    ld_tile(V_WO + 4 * (n0 + a), SRD_WO, n0 + a, V_OFF16, NTW)
                if issue:
                    for a in range(4):
                        ld_tile(V_RING + 4 * ((n0 + 4 + a) % 8), SRD_PF, a, V_OFF16, NT)
                slot = lambda n: n if n < NPRO else n % 8
            else:
                set_block()
                e("s_waitcnt vmcnt(0)")
                for a in range(4):
                    ld_tile(V_RING + 4 * ((n0 + 4 + a) % 8), SRD_PF, a, V_OFF16, NT)
                slot = lambda n: n % 8
            for r in range(4):
                for a in range(4):
                    t = V_RING + 4 * slot(n0 + a) + r
                    if r == 0:
                        e("v_dot2_f32_bf16 v%d, v%d, v%d, 0" % (V_P + a, t, V_Q + r))
                    else:
                        e("v_dot2_f32_bf16 v%d, v%d, v%d, v%d" % (V_P + a, t, V_Q + r, V_P + a))
            for ror in (8, 4, 2, 1):
                for a in range(4):
                    e("v_add_f32_dpp v%d, v%d, v%d row_ror:%d%s" % (V_P + a, V_P + a, V_P + a, ror, DPP))
            for a in range(4):
                i = n0 + a
                e("v_cndmask_b32 v%d, v%d, v%d, s[%d:%d]" % (V_SCN, V_SCN, V_P + a, S_MASK + 2 * i, S_MASK + 2 * i + 1))
    else:
        k_body_std(first)
    k_tail()

def k_body_std(first):
    NG = 16 // G
    for g in range(NG):
        n0 = G * g
        if first:
            order = [("K", n) for n in range(D)]
            for gg in range(g):
                order += [("W", G * gg + a) for a in range(G)] + [("K", G * gg + D + a) for a in range(G)]
            idx = order.index(("K", n0 + G - 1))
            w = len(order) - 1 - idx
            lastk = D - 1 + G * g
            cut = lastk - WT
            if cut >= 0:
                w = min(w, len(order) - 1 - order.index(("K", cut)))
        else:
            w = WT
        e("s_waitcnt vmcnt(%d)" % w)
        for r in range(4):
            for a in range(G):
                t = V_RING + 4 * ((n0 + a) % D) + r
                if r == 0:
                    e("v_dot2_f32_bf16 v%d, v%d, v%d, 0" % (V_P + a, t, V_Q + r))
                else:
                    e("v_dot2_f32_bf16 v%d, v%d, v%d, v%d" % (V_P + a, t, V_Q + r, V_P + a))
        if first:
            for a in range(G):
                ld_tile(V_WO + 4 * (n0 + a), SRD_WO, n0 + a, V_OFF16, NTW)
        if (n0 + D) % BLK == 0:
            set_block()
        for a in range(G):
            ld_tile(V_RING + 4 * ((n0 + a) % D), SRD_PF, (n0 + a + D) % BLK, V_OFF16, NT)
        for ror in (8, 4, 2, 1):
            if G == 2:
                e("s_nop 0")
            for a in range(G):
                e("v_add_f32_dpp v%d, v%d, v%d row_ror:%d%s" % (V_P + a, V_P + a, V_P + a, ror, DPP))
        for a in range(G):
            i = n0 + a
            e("v_cndmask_b32 v%d, v%d, v%d, s[%d:%d]" % (V_SCN, V_SCN, V_P + a, S_MASK + 2 * i, S_MASK + 2 * i + 1))

def k_tail():
    e("v_mov_b32 v%d, v%d" % (V_SC, V_SC + 1))
    e("v_mov_b32 v%d, v%d" % (V_SC + 1, V_SC + 2))
    e("v_mov_b32 v%d, v%d" % (V_SC + 2, V_SC + 3))
    e("v_cvt_pk_bf16_f32 v%d, v%d, v%d" % (V_T, V_SCN, V_SCN))
    e("v_lshlrev_b32 v%d, 16, v%d" % (V_T, V_T))
    e("v_mul_f32 v%d, s%d, v%d" % (V_T, S_SCALE, V_T))
    e("v_cvt_pk_bf16_f32 v%d, v%d, v%d" % (V_T, V_T, V_T))
    e("v_lshlrev_b32 v%d, 16, v%d" % (V_SC + 3, V_T))

def k1():
    e(".globl %s" % KN)
    e(".p2align 8")
    e(".type %s,@function" % KN)
    e("%s:" % KN)
    e("s_cmp_ge_u32 s2, 256")
    e("s_cbranch_scc1 L_end")
    e("s_load_dwordx16 s[16:31], s[0:1], 0")
    e("s_load_dwordx4 s[32:35], s[0:1], 64")
    e("s_load_dwordx2 s[36:37], s[0:1], 96")
    e("v_lshrrev_b32 v5, 6, v0")
    e("v_and_b32 v%d, 63, v0" % V_LANE)
    e("s_nop 0")
    e("v_readfirstlane_b32 s%d, v5" % S_W)
    if os.environ.get("BADMAP"):
        e("s_lshr_b32 s%d, s2, 2" % S_H64)
        e("s_and_b32 s%d, s2, 3" % S_SPLIT)
        e("s_lshl_b32 s2, s%d, 6" % S_SPLIT)
        e("s_add_u32 s2, s2, s%d" % S_H64)
    elif os.environ.get("MAP2"):
        e("s_and_b32 s%d, s2, 7" % S_H64)
        e("s_lshl_b32 s%d, s%d, 3" % (S_H64, S_H64))
        e("s_bfe_u32 s%d, s2, 0x30003" % S_SPLIT)
        e("s_add_u32 s%d, s%d, s%d" % (S_H64, S_H64, S_SPLIT))
        e("s_lshr_b32 s%d, s2, 6" % S_SPLIT)
        e("s_mov_b32 s%d, s2" % S_T2)
        e("s_lshl_b32 s2, s%d, 6" % S_SPLIT)
        e("s_add_u32 s2, s2, s%d" % S_H64)
    else:
        e("s_and_b32 s%d, s2, 63" % S_H64)
        e("s_lshr_b32 s%d, s2, 6" % S_SPLIT)
    e("s_lshr_b32 s%d, s%d, 5" % (S_B, S_H64))
    e("s_and_b32 s%d, s%d, 31" % (S_H, S_H64))
    e("v_lshlrev_b32 v%d, 4, v%d" % (V_OFF16, V_LANE))
    e("v_lshrrev_b32 v5, 4, v%d" % V_LANE)
    e("v_and_b32 v6, 15, v%d" % V_LANE)
    e("v_lshlrev_b32 v7, 13, v5")
    e("v_lshl_add_u32 v%d, v6, 4, v7" % V_WQOFF)
    e("v_lshl_add_u32 v7, v6, 2, v5")
    e("v_lshlrev_b32 v7, 1, v7")
    e("s_mov_b32 s%d, 4096" % S_C4)
    e("s_mov_b32 s%d, 0x3fb8aa3b" % S_LOG2E)
    e("s_mov_b32 s%d, 0x3db504f3" % S_SCALE)
    e("s_waitcnt lgkmcnt(0)")
    e("s_cmp_eq_u32 s%d, 0" % S_B)
    e("s_cselect_b64 s[%d:%d], s[16:17], s[26:27]" % (S_PX, S_PX + 1))
    e("s_cselect_b64 s[%d:%d], s[18:19], s[28:29]" % (S_PK, S_PK + 1))
    e("s_cselect_b64 s[%d:%d], s[20:21], s[30:31]" % (S_PV, S_PV + 1))
    e("s_cselect_b64 s[%d:%d], s[22:23], s[32:33]" % (S_PWQ, S_PWQ + 1))
    e("s_cselect_b64 s[%d:%d], s[24:25], s[34:35]" % (S_PWO, S_PWO + 1))
    stamp(0)
    if STAMP:
        e("s_mov_b64 s[34:35], 0")
    e("s_mov_b32 s%d, 8192" % S_C8)
    e("s_mov_b32 s%d, 12288" % S_C12)
    e("s_mov_b32 s%d, 0" % S_BN)
    e("s_lshl_b32 s%d, s%d, 7" % (S_T0, S_W))
    e("s_add_u32 s%d, s%d, s%d" % (SRD_X, S_PX, S_T0))
    e("s_addc_u32 s%d, s%d, 0" % (SRD_X + 1, S_PX + 1))
    e("s_mov_b32 s%d, 128" % (SRD_X + 2))
    e("s_mov_b32 s%d, 0x00020000" % (SRD_X + 3))
    e("s_lshl_b32 s%d, s%d, 8" % (S_T0, S_H))
    e("s_lshl_b32 s%d, s%d, 19" % (S_T1, S_W))
    e("s_add_u32 s%d, s%d, s%d" % (S_T0, S_T0, S_T1))
    e("s_add_u32 s%d, s%d, s%d" % (SRD_WQ, S_PWQ, S_T0))
    e("s_addc_u32 s%d, s%d, 0" % (SRD_WQ + 1, S_PWQ + 1))
    e("s_mov_b32 s%d, %d" % (SRD_WQ + 2, 63 * 8192 + 256))
    e("s_mov_b32 s%d, 0x00020000" % (SRD_WQ + 3))
    e("buffer_load_ushort v%d, v7, s[%d:%d], 0 offen" % (V_X, SRD_X, SRD_X + 3))
    e("s_mov_b32 s%d, 0" % S_T0)
    for i in range(16):
        e("buffer_load_dwordx4 v[%d:%d], v%d, s[%d:%d], s%d offen%s" %
          (V_WQ + 4 * i, V_WQ + 4 * i + 3, V_WQOFF, SRD_WQ, SRD_WQ + 3, S_T0, NTW))
        if i != 15:
            e("s_add_u32 s%d, s%d, 32768" % (S_T0, S_T0))
    e("s_lshl_b32 s%d, s%d, 21" % (S_T0, S_H))
    e("s_lshl_b32 s%d, s%d, 19" % (S_T1, S_SPLIT))
    e("s_add_u32 s%d, s%d, s%d" % (S_T0, S_T0, S_T1))
    e("s_lshl_b32 s%d, s%d, %d" % (S_T1, S_W, 10 + LGB))
    e("s_add_u32 s%d, s%d, s%d" % (S_T0, S_T0, S_T1))
    e("s_add_u32 s%d, s%d, s%d" % (S_KB, S_PK, S_T0))
    e("s_addc_u32 s%d, s%d, 0" % (S_KB + 1, S_PK + 1))
    e("s_add_u32 s%d, s%d, s%d" % (S_VB, S_PV, S_T0))
    e("s_addc_u32 s%d, s%d, 0" % (S_VB + 1, S_PV + 1))
    e("s_mov_b32 s%d, 0x00020000" % (SRD_PF + 3))
    e("s_barrier")
    for n in range(NPRO):
        if n % BLK == 0:
            set_block()
        ld_tile(V_RING + 4 * n, SRD_PF, n % BLK, V_OFF16, NT)
    e("s_load_dwordx4 s[8:11], s[0:1], 80")
    e("s_lshl_b32 s%d, s%d, 17" % (S_T0, S_H))
    e("s_lshl_b32 s%d, s%d, 14" % (S_T1, S_W))
    e("s_add_u32 s%d, s%d, s%d" % (S_T0, S_T0, S_T1))
    e("s_add_u32 s%d, s%d, s%d" % (SRD_WO, S_PWO, S_T0))
    e("s_addc_u32 s%d, s%d, 0" % (SRD_WO + 1, S_PWO + 1))
    e("s_mov_b32 s%d, 16384" % (SRD_WO + 2))
    e("s_mov_b32 s%d, 0x00020000" % (SRD_WO + 3))
    e("s_mov_b32 s%d, s36" % SRD_WS)
    e("s_mov_b32 s%d, s37" % (SRD_WS + 1))
    e("s_mov_b32 s%d, %d" % (SRD_WS + 2, 256 * 2048 + 256 * 8))
    e("s_mov_b32 s%d, 0x00020000" % (SRD_WS + 3))
    for i in range(16):
        m = (0x00010001 << i) & 0xffffffff
        e("s_mov_b32 s%d, 0x%08x" % (S_MASK + 2 * i, m))
        e("s_mov_b32 s%d, 0x%08x" % (S_MASK + 2 * i + 1, m))
    for d in range(8):
        e("v_mov_b32 v%d, 0" % (V_ACC + d))
    e("s_waitcnt vmcnt(%d)" % (NPRO + 15))
    e("v_lshlrev_b32 v%d, 16, v%d" % (V_X, V_X))
    e("s_nop 1")
    for i in range(16):
        e("s_waitcnt vmcnt(%d)" % (NPRO + 15 - i))
        fma_tile(V_ACC, V_WQ + 4 * i, V_X, i)
    row_reduce8(V_ACC)
    e("v_lshrrev_b32 v5, 4, v%d" % V_LANE)
    e("v_and_b32 v6, 15, v%d" % V_LANE)
    e("v_lshlrev_b32 v7, 3, v5")
    e("v_lshl_add_u32 v7, v6, 5, v7")
    e("s_lshl_b32 s%d, s%d, 9" % (S_T0, S_W))
    e("v_add_u32 v%d, s%d, v7" % (V_A0, S_T0))
    e("ds_write_b64 v%d, v[%d:%d] offset:%d" % (V_A0, V_ACC, V_ACC + 1, LDS_Q))
    e("s_waitcnt lgkmcnt(0)")
    e("s_barrier")
    e("v_lshlrev_b32 v7, 5, v6")
    for w in range(8):
        e("ds_read_b128 v[%d:%d], v7 offset:%d" % (V_WQ + 8 * w, V_WQ + 8 * w + 3, LDS_Q + w * 512))
        e("ds_read_b128 v[%d:%d], v7 offset:%d" % (V_WQ + 8 * w + 4, V_WQ + 8 * w + 7, LDS_Q + w * 512 + 16))
    e("s_waitcnt lgkmcnt(0)")
    for w in range(1, 8):
        for d in range(8):
            e("v_add_f32 v%d, v%d, v%d" % (V_WQ + d, V_WQ + d, V_WQ + 8 * w + d))
    for r in range(4):
        e("v_cvt_pk_bf16_f32 v%d, v%d, v%d" % (V_Q + r, V_WQ + 2 * r, V_WQ + 2 * r + 1))
    stamp(1)
    e("s_nop 1")
    k_body(True)
    e("s_mov_b32 s%d, 0" % S_CNT)
    e("L_kloop:")
    k_body(False)
    e("s_add_u32 s%d, s%d, 1" % (S_CNT, S_CNT))
    e("s_cmp_lt_u32 s%d, 3" % S_CNT)
    e("s_cbranch_scc1 L_kloop")
    stamp(2)
    e("v_max_f32 v%d, v%d, v%d" % (V_M, V_SC, V_SC + 1))
    e("v_max3_f32 v%d, v%d, v%d, v%d" % (V_M, V_M, V_SC + 2, V_SC + 3))
    wave_allreduce("v_max_f32", V_M)
    for t in range(4):
        e("v_sub_f32 v%d, v%d, v%d" % (V_SC + t, V_SC + t, V_M))
    for t in range(4):
        e("v_mul_f32 v%d, s%d, v%d" % (V_SC + t, S_LOG2E, V_SC + t))
    for t in range(4):
        e("v_exp_f32 v%d, v%d" % (V_SC + t, V_SC + t))
    e("s_nop 0")
    e("v_add_f32 v%d, v%d, v%d" % (V_L, V_SC, V_SC + 1))
    e("v_add_f32 v%d, v%d, v%d" % (V_L, V_L, V_SC + 2))
    e("v_add_f32 v%d, v%d, v%d" % (V_L, V_L, V_SC + 3))
    wave_allreduce("v_add_f32", V_L)
    e("s_lshl_b32 s%d, s%d, 3" % (S_T0, S_W))
    e("v_mov_b32 v5, s%d" % S_T0)
    e("s_mov_b64 exec, 1")
    e("ds_write_b64 v5, v[%d:%d] offset:%d" % (V_M, V_L, LDS_ML))
    e("s_mov_b64 exec, -1")
    for d in range(8):
        e("v_mov_b32 v%d, 0" % (V_ACC + d))
    if not NOUNP:
        e("s_waitcnt vmcnt(%d)" % (4 if EARLY else NPRO))
        for r in range(16):
            for k in range(4):
                unpack(V_U + 8 * r + 2 * k, V_U + 8 * r + 2 * k + 1, V_WO + 4 * r + k)
    e("s_mov_b32 s%d, 0" % S_CNT)
    e("L_vloop:")
    for g in range(16 // G):
        n0 = G * g
        if EARLY:
            set_block()
            e("s_waitcnt vmcnt(0)")
            for a in range(4):
                ld_tile(V_RING + 4 * ((n0 + 4 + a) % 8), SRD_PF, a, V_OFF16, NT)
            for a in range(4):
                fma_tile(V_ACC, V_RING + 4 * ((n0 + a) % 8), V_SC, n0 + a)
            continue
        e("s_waitcnt vmcnt(%d)" % WT)
        for a in range(G):
            fma_tile(V_ACC, V_RING + 4 * ((n0 + a) % D), V_SC, n0 + a)
        if (n0 + D) % BLK == 0:
            set_block()
        for a in range(G):
            ld_tile(V_RING + 4 * ((n0 + a) % D), SRD_PF, (n0 + a + D) % BLK, V_OFF16, NT)
    e("v_mov_b32 v%d, v%d" % (V_SC, V_SC + 1))
    e("v_mov_b32 v%d, v%d" % (V_SC + 1, V_SC + 2))
    e("v_mov_b32 v%d, v%d" % (V_SC + 2, V_SC + 3))
    e("s_add_u32 s%d, s%d, 1" % (S_CNT, S_CNT))
    e("s_cmp_lt_u32 s%d, 4" % S_CNT)
    e("s_cbranch_scc1 L_vloop")
    stamp(3)
    row_reduce8(V_ACC)
    e("ds_write_b64 v%d, v[%d:%d] offset:%d" % (V_A0, V_ACC, V_ACC + 1, LDS_O))
    e("v_mov_b32 v5, 0")
    e("s_lshl_b32 s%d, s%d, 6" % (S_T0, S_W))
    e("v_lshl_add_u32 v7, v6, 2, s%d" % S_T0)
    e("s_waitcnt lgkmcnt(0)")
    e("s_barrier")
    ML = V_ML
    OP = V_OP
    for i in range(4):
        e("ds_read_b128 v[%d:%d], v5 offset:%d" % (ML + 4 * i, ML + 4 * i + 3, LDS_ML + 16 * i))
    for w in range(8):
        e("ds_read_b32 v%d, v7 offset:%d" % (OP + w, LDS_O + 512 * w))
    e("s_waitcnt lgkmcnt(8)")
    e("v_max3_f32 v%d, v%d, v%d, v%d" % (V_M, ML + 0, ML + 2, ML + 4))
    e("v_max3_f32 v%d, v%d, v%d, v%d" % (V_M, V_M, ML + 6, ML + 8))
    e("v_max3_f32 v%d, v%d, v%d, v%d" % (V_M, V_M, ML + 10, ML + 12))
    e("v_max_f32 v%d, v%d, v%d" % (V_M, V_M, ML + 14))
    for w in range(8):
        e("v_sub_f32 v%d, v%d, v%d" % (ML + 2 * w, ML + 2 * w, V_M))
    for w in range(8):
        e("v_mul_f32 v%d, s%d, v%d" % (ML + 2 * w, S_LOG2E, ML + 2 * w))
    for w in range(8):
        e("v_exp_f32 v%d, v%d" % (ML + 2 * w, ML + 2 * w))
    e("s_waitcnt lgkmcnt(0)")
    VO = V_SC
    e("v_mul_f32 v%d, v%d, v%d" % (VO, ML, OP))
    for w in range(1, 8):
        e("v_fmac_f32 v%d, v%d, v%d" % (VO, ML + 2 * w, OP + w))
    e("v_mul_f32 v%d, v%d, v%d" % (V_L, ML, ML + 1))
    for w in range(1, 8):
        e("v_fmac_f32 v%d, v%d, v%d" % (V_L, ML + 2 * w, ML + 2 * w + 1))
    if NOUNP:
        for d in range(8):
            e("v_mov_b32 v%d, 0" % (V_ACC + d))
        for r in range(16):
            fma_tile(V_ACC, V_WO + 4 * r, VO, r)
    else:
      for r in range(16):
        for d in range(8):
            if r == 0:
                e("v_mul_f32_dpp v%d, v%d, v%d row_newbcast:%d%s" % (V_ACC + d, VO, V_U + 8 * r + d, r, DPP))
            else:
                e("v_fmac_f32_dpp v%d, v%d, v%d row_newbcast:%d%s" % (V_ACC + d, VO, V_U + 8 * r + d, r, DPP))
    e("s_lshl_b32 s%d, s%d, 11" % (S_T0, S_W))
    e("v_lshl_add_u32 v5, v%d, 5, s%d" % (V_LANE, S_T0))
    e("ds_write_b128 v5, v[%d:%d] offset:%d" % (V_ACC, V_ACC + 3, LDS_Y))
    e("ds_write_b128 v5, v[%d:%d] offset:%d" % (V_ACC + 4, V_ACC + 7, LDS_Y + 16))
    e("v_lshlrev_b32 v5, 4, v0")
    e("s_waitcnt vmcnt(0) lgkmcnt(0)")
    e("s_barrier")
    e("s_cmp_ge_u32 s%d, 2" % S_W)
    e("s_cbranch_scc1 L_stored")
    YR = V_RING
    for w in range(8):
        e("ds_read_b128 v[%d:%d], v5 offset:%d" % (YR + 4 * w, YR + 4 * w + 3, LDS_Y + 2048 * w))
    e("s_lshl_b32 s%d, s2, 11" % S_T0)
    e("s_lshl_b32 s%d, s2, 3" % S_T1)
    e("s_add_u32 s%d, s%d, %d" % (S_T1, S_T1, 256 * 2048))
    e("s_waitcnt lgkmcnt(0)")
    for w in range(1, 8):
        for d in range(4):
            e("v_add_f32 v%d, v%d, v%d" % (YR + d, YR + d, YR + 4 * w + d))
    e("buffer_store_dwordx4 v[%d:%d], v5, s[%d:%d], s%d offen sc1" % (YR, YR + 3, SRD_WS, SRD_WS + 3, S_T0))
    e("s_cmp_lg_u32 s%d, 0" % S_W)
    e("s_cbranch_scc1 L_stored")
    e("s_mov_b64 exec, 1")
    e("buffer_store_dwordx2 v[%d:%d], v5, s[%d:%d], s%d offen sc1" % (V_M, V_L, SRD_WS, SRD_WS + 3, S_T1))
    e("s_mov_b64 exec, -1")
    e("L_stored:")
    e("s_mov_b32 s%d, s%d" % (SRD_DBG, S_PDBG))
    e("s_mov_b32 s%d, s%d" % (SRD_DBG + 1, S_PDBG + 1))
    e("s_mov_b32 s%d, 256" % (SRD_DBG + 2))
    e("s_mov_b32 s%d, 0x00020000" % (SRD_DBG + 3))
    e("s_mov_b32 s%d, s%d" % (SRD_OUT, S_POUT))
    e("s_mov_b32 s%d, s%d" % (SRD_OUT + 1, S_POUT + 1))
    e("s_mov_b32 s%d, 2048" % (SRD_OUT + 2))
    e("s_mov_b32 s%d, 0x00020000" % (SRD_OUT + 3))
    e("v_mov_b32 v5, 0")
    e("s_waitcnt vmcnt(0)")
    e("s_barrier")
    stamp(4)
    e("s_cmp_lg_u32 s%d, 0" % S_W)
    e("s_cbranch_scc1 L_wait_role")
    if STAMP:
        e("s_mov_b32 s%d, %d" % (SRD_WS + 2, 2 << 20))
        e("s_lshl_b32 s%d, s2, 6" % S_T0)
        e("s_add_u32 s%d, s%d, %d" % (S_T0, S_T0, 1 << 20))
        e("s_mov_b64 exec, 1")
        for k in range(8):
            e("v_mov_b32 v8, s%d" % (STR[k]))
            e("v_mov_b32 v9, s%d" % (STR[k] + 1))
            e("buffer_store_dwordx2 v[8:9], v5, s[%d:%d], s%d offen offset:%d" % (SRD_WS, SRD_WS + 3, S_T0, 8 * k))
            e("s_nop 2")
        e("s_mov_b64 exec, -1")
    e("v_mov_b32 v7, 1")
    e("s_mov_b64 exec, 1")
    e("buffer_atomic_add v7, v5, s[%d:%d], 0 offen sc0" % (SRD_DBG, SRD_DBG + 3))
    e("s_waitcnt vmcnt(0)")
    e("s_mov_b64 exec, -1")
    e("v_readfirstlane_b32 s%d, v7" % S_T0)
    e("s_nop 3")
    e("s_cmp_lt_u32 s%d, %d" % (S_T0, 256 - NRED))
    e("s_cbranch_scc1 L_publish")
    e("s_cmp_eq_u32 s%d, 255" % S_T0)
    e("s_cbranch_scc1 L_publish")
    e("s_mov_b32 s%d, 0" % S_CNT)
    e("L_poll:")
    e("s_mov_b64 exec, 1")
    e("buffer_load_dword v7, v5, s[%d:%d], 0 offen sc1" % (SRD_DBG, SRD_DBG + 3))
    e("s_waitcnt vmcnt(0)")
    e("s_mov_b64 exec, -1")
    e("v_readfirstlane_b32 s%d, v7" % S_T1)
    e("s_nop 3")
    e("s_cmp_ge_u32 s%d, 256" % S_T1)
    e("s_cbranch_scc1 L_publish")
    e("s_add_u32 s%d, s%d, 1" % (S_CNT, S_CNT))
    e("s_cmp_lt_u32 s%d, 0x100000" % S_CNT)
    e("s_cbranch_scc0 L_publish")
    e("s_sleep 1")
    e("s_branch L_poll")
    e("L_publish:")
    stamp(5)
    e("v_mov_b32 v7, s%d" % S_T0)
    e("ds_write_b32 v5, v7 offset:%d" % LDS_ROLE)
    e("s_waitcnt lgkmcnt(0)")
    e("L_wait_role:")
    e("s_barrier")
    e("s_cmp_ge_u32 s%d, 4" % S_W)
    e("s_cbranch_scc1 L_end")
    e("ds_read_b32 v7, v5 offset:%d" % LDS_ROLE)
    e("s_waitcnt lgkmcnt(0)")
    e("v_readfirstlane_b32 s%d, v7" % S_T0)
    e("s_nop 3")
    e("s_cmp_lt_u32 s%d, %d" % (S_T0, 256 - NRED))
    e("s_cbranch_scc1 L_end")
    e("s_sub_u32 s%d, s%d, %d" % (S_T0, S_T0, 256 - NRED))
    e("s_lshr_b32 s%d, s%d, 4" % (S_B, S_T0))
    e("s_and_b32 s%d, s%d, 15" % (S_H, S_T0))
    e("v_lshrrev_b32 v1, 3, v0")
    e("v_and_b32 v2, 7, v0")
    e("s_lshl_b32 s%d, s%d, 5" % (S_T0, S_B))
    e("v_add_u32 v3, s%d, v1" % S_T0)
    e("s_lshl_b32 s%d, s%d, 7" % (S_T1, S_H))
    e("v_lshl_add_u32 v4, v2, 4, s%d" % S_T1)
    e("v_lshl_add_u32 v4, v3, 11, v4")
    e("v_lshlrev_b32 v5, 3, v3")
    for s in range(4):
        e("s_mov_b32 s%d, %d" % (16 + s, 256 * 2048 + s * 64 * 8))
        e("s_mov_b32 s%d, %d" % (20 + s, s * 64 * 2048))
    for s in range(4):
        e("buffer_load_dwordx2 v[%d:%d], v5, s[%d:%d], s%d offen sc1" % (8 + 2 * s, 9 + 2 * s, SRD_WS, SRD_WS + 3, 16 + s))
    for s in range(4):
        e("buffer_load_dwordx4 v[%d:%d], v4, s[%d:%d], s%d offen sc1" % (16 + 4 * s, 19 + 4 * s, SRD_WS, SRD_WS + 3, 20 + s))
    e("s_waitcnt vmcnt(4)")
    e("v_max3_f32 v6, v8, v10, v12")
    e("v_max_f32 v6, v6, v14")
    for s in range(4):
        e("v_sub_f32 v%d, v%d, v6" % (8 + 2 * s, 8 + 2 * s))
    for s in range(4):
        e("v_mul_f32 v%d, s%d, v%d" % (8 + 2 * s, S_LOG2E, 8 + 2 * s))
    for s in range(4):
        e("v_exp_f32 v%d, v%d" % (8 + 2 * s, 8 + 2 * s))
    e("s_nop 0")
    e("v_mul_f32 v7, v8, v9")
    for s in range(1, 4):
        e("v_fmac_f32 v7, v%d, v%d" % (8 + 2 * s, 9 + 2 * s))
    e("v_rcp_f32 v7, v7")
    e("s_nop 0")
    for s in range(4):
        e("v_mul_f32 v%d, v%d, v7" % (8 + 2 * s, 8 + 2 * s))
    e("s_waitcnt vmcnt(0)")
    stamp(6)
    for d in range(4):
        e("v_mul_f32 v%d, v8, v%d" % (32 + d, 16 + d))
    for s in range(1, 4):
        for d in range(4):
            e("v_fmac_f32 v%d, v%d, v%d" % (32 + d, 8 + 2 * s, 16 + 4 * s + d))
    e("s_nop 1")
    for d in range(4):
        e("v_add_f32_dpp v%d, v%d, v%d row_ror:8%s" % (32 + d, 32 + d, 32 + d, DPP))
    e("v_lshrrev_b32 v6, 4, v0")
    e("v_lshlrev_b32 v6, 7, v6")
    e("v_lshl_add_u32 v6, v2, 4, v6")
    e("ds_write_b128 v6, v[32:35] offset:%d" % LDS_R)
    e("s_waitcnt lgkmcnt(0)")
    e("s_barrier")
    e("s_cmp_lg_u32 s%d, 0" % S_W)
    e("s_cbranch_scc1 L_end")
    e("v_lshlrev_b32 v6, 3, v0")
    e("v_lshlrev_b32 v7, 2, v0")
    e("s_mov_b64 exec, 0xffff")
    for r in range(16):
        e("ds_read_b64 v[%d:%d], v6 offset:%d" % (8 + 2 * r, 9 + 2 * r, LDS_R + 128 * r))
    e("s_lshl_b32 s%d, s%d, 10" % (S_T0, S_B))
    e("s_lshl_b32 s%d, s%d, 6" % (S_T1, S_H))
    e("s_add_u32 s%d, s%d, s%d" % (S_T0, S_T0, S_T1))
    e("s_waitcnt lgkmcnt(0)")
    for r in range(1, 16):
        e("v_add_f32 v8, v8, v%d" % (8 + 2 * r))
        e("v_add_f32 v9, v9, v%d" % (9 + 2 * r))
    e("v_cvt_pk_bf16_f32 v8, v8, v9")
    e("buffer_store_dword v8, v7, s[%d:%d], s%d offen" % (SRD_OUT, SRD_OUT + 3, S_T0))
    if STAMP:
        e("s_waitcnt vmcnt(0)")
        stamp(7)
        e("s_lshl_b32 s%d, s2, 6" % S_T0)
        e("s_add_u32 s%d, s%d, %d" % (S_T0, S_T0, 1 << 20))
        e("s_mov_b64 exec, 1")
        e("v_mov_b32 v5, 0")
        for k in (5, 6, 7):
            e("v_mov_b32 v8, s%d" % (STR[k]))
            e("v_mov_b32 v9, s%d" % (STR[k] + 1))
            e("buffer_store_dwordx2 v[8:9], v5, s[%d:%d], s%d offen offset:%d" % (SRD_WS, SRD_WS + 3, S_T0, 8 * k))
            e("s_nop 2")
    e("L_end:")
    e("s_endpgm")

def kd(name, vgpr, sgpr):
    return """.amdhsa_kernel %s
  .amdhsa_next_free_vgpr %d
  .amdhsa_next_free_sgpr %d
  .amdhsa_accum_offset %d
  .amdhsa_group_segment_fixed_size 0
  .amdhsa_kernarg_size 104
  .amdhsa_user_sgpr_count 2
  .amdhsa_user_sgpr_kernarg_segment_ptr 1
  .amdhsa_system_sgpr_workgroup_id_x 1
  .amdhsa_float_denorm_mode_32 3
.end_amdhsa_kernel
""" % (name, vgpr, sgpr, (vgpr + 3) // 4 * 4)

k1()
txt = HEADER + "\n".join(L) + "\n" + '.section .rodata,"a"\n.p2align 6\n' + kd(KN, 256, 102)
open(OUT, "w").write(txt)
print("wrote", OUT, len(L), "lines")
```

```python
import sys, os

NAME = "concat_heads__mha_block_cached__gqa_block_cached__decode"
KN = NAME + "_kernel"
OUT = sys.argv[1] if len(sys.argv) > 1 else "cdna_kernels/%s.s" % NAME
NT = " nt"
NTW = " nt"
D = int(os.environ.get("D", "8"))
G = int(os.environ.get("G", "4"))
WT = int(os.environ.get("W", str(D - G)))
assert WT <= D - G
STAMP = os.environ.get("STAMP", "") == "1"
NRED = 32
EPI = os.environ.get("EPI", "") == "1"
EARLY = os.environ.get("EARLY", "") == "1"
BLK = int(os.environ.get("BLK", "8"))
NB = 64 // BLK
NPRO = int(os.environ.get("NPRO", "4")) if os.environ.get("EARLY", "") == "1" else D
LGB = BLK.bit_length() - 1

HEADER = """; Kernarg layout for this problem (104 bytes, ptrs only, base s[0:1]):
; @launch grid=(256,1,1) block=(512,1,1) lds=28672
.amdgcn_target "amdgcn-amd-amdhsa--gfx950"
.text
"""

L = []
def e(s=""):
    L.append("    " + s if s and not s.endswith(":") else s)

DPP = " row_mask:0xf bank_mask:0xf"

S_W = 3; S_H64 = 4; S_SPLIT = 5; S_B = 6; S_H = 7
S_PX = 8; S_PK = 10; S_PV = 12; S_PWQ = 14
S_POUT = 8; S_PDBG = 10
S_PWO = 38
SRD_PF = 40
SRD_WQ = 44
SRD_OUT = 44
SRD_WO = 48
SRD_DBG = 48
SRD_X = 52
SRD_WS = 56
S_KB = 60
S_VB = 62
S_C4 = 64
S_LOG2E = 65; S_SCALE = 66; S_T0 = 67; S_T1 = 68; S_CNT = 69
S_MASK = 70
S_R0 = 16
S_BN = 20
S_C8 = 21; S_C12 = 22; S_T2 = 23

V_LANE = 1
V_OFF16 = 2
V_WQOFF = 3
V_X = 4
V_Q = 8
V_SC = 12
V_SCN = 16
V_P = 20
V_T = 24
V_ACC = 32
V_M = 40
V_L = 41
V_A0 = 42
V_OP = 44
V_RING = 64
NOUNP = D > 8
V_ML = 128 if NOUNP else 96
V_U = 112
V_WQ = 128
V_WO = 192

LDS_Q = 0
LDS_O = 4096
LDS_ML = 8192
LDS_ROLE = 8320
LDS_Y = 8448
LDS_R = 24832

STR = [24, 26, 28, 30, 32, 34, 12, 14]
def stamp(k):
    if STAMP:
        e("s_memrealtime s[%d:%d]" % (STR[k], STR[k] + 1))
        e("s_waitcnt lgkmcnt(0)")

def unpack(dst_lo, dst_hi, src):
    e("v_lshlrev_b32 v%d, 16, v%d" % (dst_lo, src))
    e("v_and_b32 v%d, 0xffff0000, v%d" % (dst_hi, src))

def fma_tile(acc, tile, vsrc, lane):
    for r in range(4):
        unpack(V_T + 2 * r, V_T + 2 * r + 1, tile + r)
    for d in range(8):
        e("v_fmac_f32_dpp v%d, v%d, v%d row_newbcast:%d%s" % (acc + d, vsrc, V_T + d, lane, DPP))

def row_reduce8(acc):
    e("s_nop 1")
    for d in range(4):
        e("v_permlane32_swap_b32 v%d, v%d" % (acc + d, acc + d + 4))
    e("s_nop 1")
    for d in range(4):
        e("v_add_f32 v%d, v%d, v%d" % (acc + d, acc + d, acc + d + 4))
    e("s_nop 1")
    for d in range(2):
        e("v_permlane16_swap_b32 v%d, v%d" % (acc + d, acc + d + 2))
    e("s_nop 1")
    for d in range(2):
        e("v_add_f32 v%d, v%d, v%d" % (acc + d, acc + d, acc + d + 2))

def wave_allreduce(op, v):
    for r in (8, 4, 2, 1):
        e("s_nop 1")
        e("%s_dpp v%d, v%d, v%d row_ror:%d%s" % (op, v, v, v, r, DPP))
    e("s_nop 1")
    for i in range(4):
        e("v_readlane_b32 s%d, v%d, %d" % (S_R0 + i, v, 16 * i))
    e("s_nop 1")
    e("v_mov_b32 v%d, s%d" % (v, S_R0))
    for i in range(1, 4):
        e("%s v%d, s%d, v%d" % (op, v, S_R0 + i, v))

def ld_tile(dst, srd, i, voff, nt=""):
    soff = ["0", "s%d" % S_C4, "s%d" % S_C8, "s%d" % S_C12][i // 4]
    e("buffer_load_dwordx4 v[%d:%d], v%d, s[%d:%d], %s offen offset:%d%s" %
      (dst, dst + 3, voff, srd, srd + 3, soff, (i % 4) * 1024, nt))

def set_block():
    e("s_and_b32 s%d, s%d, %d" % (S_T0, S_BN, NB - 1))
    e("s_lshl_b32 s%d, s%d, %d" % (S_T0, S_T0, 13 + LGB))
    e("s_cmp_lt_u32 s%d, %d" % (S_BN, NB))
    e("s_cselect_b64 s[%d:%d], s[%d:%d], s[%d:%d]" % (SRD_PF, SRD_PF + 1, S_KB, S_KB + 1, S_VB, S_VB + 1))
    e("s_add_u32 s%d, s%d, s%d" % (SRD_PF, SRD_PF, S_T0))
    e("s_addc_u32 s%d, s%d, 0" % (SRD_PF + 1, SRD_PF + 1))
    e("s_cmp_lt_u32 s%d, %d" % (S_BN, 2 * NB))
    e("s_cselect_b32 s%d, %d, 0" % (SRD_PF + 2, BLK * 1024))
    e("s_add_u32 s%d, s%d, 1" % (S_BN, S_BN))

def k_body(first):
    if EARLY:
        for g in range(4):
            n0 = 4 * g
            if first:
                order = [("K", n) for n in range(NPRO)]
                for gg in range(g):
                    order += [("W", 4 * gg + a) for a in range(4)]
                    if 4 * gg + 4 >= NPRO:
                        order += [("K", 4 * gg + 4 + a) for a in range(4)]
                issue = n0 + 4 >= NPRO
                if issue:
                    set_block()
                    e("s_waitcnt vmcnt(0)")
                else:
                    e("s_waitcnt vmcnt(%d)" % (len(order) - 1 - order.index(("K", n0 + 3))))
                for a in range(4):
                    ld_tile(V_WO + 4 * (n0 + a), SRD_WO, n0 + a, V_OFF16, NTW)
                if issue:
                    for a in range(4):
                        ld_tile(V_RING + 4 * ((n0 + 4 + a) % 8), SRD_PF, a, V_OFF16, NT)
                slot = lambda n: n if n < NPRO else n % 8
            else:
                set_block()
                e("s_waitcnt vmcnt(0)")
                for a in range(4):
                    ld_tile(V_RING + 4 * ((n0 + 4 + a) % 8), SRD_PF, a, V_OFF16, NT)
                slot = lambda n: n % 8
            for r in range(4):
                for a in range(4):
                    t = V_RING + 4 * slot(n0 + a) + r
                    if r == 0:
                        e("v_dot2_f32_bf16 v%d, v%d, v%d, 0" % (V_P + a, t, V_Q + r))
                    else:
                        e("v_dot2_f32_bf16 v%d, v%d, v%d, v%d" % (V_P + a, t, V_Q + r, V_P + a))
            for ror in (8, 4, 2, 1):
                for a in range(4):
                    e("v_add_f32_dpp v%d, v%d, v%d row_ror:%d%s" % (V_P + a, V_P + a, V_P + a, ror, DPP))
            for a in range(4):
                i = n0 + a
                e("v_cndmask_b32 v%d, v%d, v%d, s[%d:%d]" % (V_SCN, V_SCN, V_P + a, S_MASK + 2 * i, S_MASK + 2 * i + 1))
    else:
        k_body_std(first)
    k_tail()

def k_body_std(first):
    NG = 16 // G
    for g in range(NG):
        n0 = G * g
        if first:
            order = [("K", n) for n in range(D)]
            for gg in range(g):
                order += [("W", G * gg + a) for a in range(G)] + [("K", G * gg + D + a) for a in range(G)]
            idx = order.index(("K", n0 + G - 1))
            w = len(order) - 1 - idx
            lastk = D - 1 + G * g
            cut = lastk - WT
            if cut >= 0:
                w = min(w, len(order) - 1 - order.index(("K", cut)))
        else:
            w = WT
        e("s_waitcnt vmcnt(%d)" % w)
        for r in range(4):
            for a in range(G):
                t = V_RING + 4 * ((n0 + a) % D) + r
                if r == 0:
                    e("v_dot2_f32_bf16 v%d, v%d, v%d, 0" % (V_P + a, t, V_Q + r))
                else:
                    e("v_dot2_f32_bf16 v%d, v%d, v%d, v%d" % (V_P + a, t, V_Q + r, V_P + a))
        if first:
            for a in range(G):
                ld_tile(V_WO + 4 * (n0 + a), SRD_WO, n0 + a, V_OFF16, NTW)
        if (n0 + D) % BLK == 0:
            set_block()
        for a in range(G):
            ld_tile(V_RING + 4 * ((n0 + a) % D), SRD_PF, (n0 + a + D) % BLK, V_OFF16, NT)
        for ror in (8, 4, 2, 1):
            if G == 2:
                e("s_nop 0")
            for a in range(G):
                e("v_add_f32_dpp v%d, v%d, v%d row_ror:%d%s" % (V_P + a, V_P + a, V_P + a, ror, DPP))
        for a in range(G):
            i = n0 + a
            e("v_cndmask_b32 v%d, v%d, v%d, s[%d:%d]" % (V_SCN, V_SCN, V_P + a, S_MASK + 2 * i, S_MASK + 2 * i + 1))

def k_tail():
    e("v_mov_b32 v%d, v%d" % (V_SC, V_SC + 1))
    e("v_mov_b32 v%d, v%d" % (V_SC + 1, V_SC + 2))
    e("v_mov_b32 v%d, v%d" % (V_SC + 2, V_SC + 3))
    e("v_cvt_pk_bf16_f32 v%d, v%d, v%d" % (V_T, V_SCN, V_SCN))
    e("v_lshlrev_b32 v%d, 16, v%d" % (V_T, V_T))
    e("v_mul_f32 v%d, s%d, v%d" % (V_T, S_SCALE, V_T))
    e("v_cvt_pk_bf16_f32 v%d, v%d, v%d" % (V_T, V_T, V_T))
    e("v_lshlrev_b32 v%d, 16, v%d" % (V_SC + 3, V_T))

def k1():
    e(".globl %s" % KN)
    e(".p2align 8")
    e(".type %s,@function" % KN)
    e("%s:" % KN)
    e("s_cmp_ge_u32 s2, 256")
    e("s_cbranch_scc1 L_end")
    e("s_load_dwordx16 s[16:31], s[0:1], 0")
    e("s_load_dwordx4 s[32:35], s[0:1], 64")
    e("s_load_dwordx2 s[36:37], s[0:1], 96")
    e("v_lshrrev_b32 v5, 6, v0")
    e("v_and_b32 v%d, 63, v0" % V_LANE)
    e("s_nop 0")
    e("v_readfirstlane_b32 s%d, v5" % S_W)
    if os.environ.get("BADMAP"):
        e("s_lshr_b32 s%d, s2, 2" % S_H64)
        e("s_and_b32 s%d, s2, 3" % S_SPLIT)
        e("s_lshl_b32 s2, s%d, 6" % S_SPLIT)
        e("s_add_u32 s2, s2, s%d" % S_H64)
    elif os.environ.get("MAP2"):
        e("s_and_b32 s%d, s2, 7" % S_H64)
        e("s_lshl_b32 s%d, s%d, 3" % (S_H64, S_H64))
        e("s_bfe_u32 s%d, s2, 0x30003" % S_SPLIT)
        e("s_add_u32 s%d, s%d, s%d" % (S_H64, S_H64, S_SPLIT))
        e("s_lshr_b32 s%d, s2, 6" % S_SPLIT)
        e("s_mov_b32 s%d, s2" % S_T2)
        e("s_lshl_b32 s2, s%d, 6" % S_SPLIT)
        e("s_add_u32 s2, s2, s%d" % S_H64)
    else:
        e("s_and_b32 s%d, s2, 63" % S_H64)
        e("s_lshr_b32 s%d, s2, 6" % S_SPLIT)
    e("s_lshr_b32 s%d, s%d, 5" % (S_B, S_H64))
    e("s_and_b32 s%d, s%d, 31" % (S_H, S_H64))
    e("v_lshlrev_b32 v%d, 4, v%d" % (V_OFF16, V_LANE))
    e("v_lshrrev_b32 v5, 4, v%d" % V_LANE)
    e("v_and_b32 v6, 15, v%d" % V_LANE)
    e("v_lshlrev_b32 v7, 13, v5")
    e("v_lshl_add_u32 v%d, v6, 4, v7" % V_WQOFF)
    e("v_lshl_add_u32 v7, v6, 2, v5")
    e("v_lshlrev_b32 v7, 1, v7")
    e("s_mov_b32 s%d, 4096" % S_C4)
    e("s_mov_b32 s%d, 0x3fb8aa3b" % S_LOG2E)
    e("s_mov_b32 s%d, 0x3db504f3" % S_SCALE)
    e("s_waitcnt lgkmcnt(0)")
    e("s_cmp_eq_u32 s%d, 0" % S_B)
    e("s_cselect_b64 s[%d:%d], s[16:17], s[26:27]" % (S_PX, S_PX + 1))
    e("s_cselect_b64 s[%d:%d], s[18:19], s[28:29]" % (S_PK, S_PK + 1))
    e("s_cselect_b64 s[%d:%d], s[20:21], s[30:31]" % (S_PV, S_PV + 1))
    e("s_cselect_b64 s[%d:%d], s[22:23], s[32:33]" % (S_PWQ, S_PWQ + 1))
    e("s_cselect_b64 s[%d:%d], s[24:25], s[34:35]" % (S_PWO, S_PWO + 1))
    stamp(0)
    if STAMP:
        e("s_mov_b64 s[34:35], 0")
    e("s_mov_b32 s%d, 8192" % S_C8)
    e("s_mov_b32 s%d, 12288" % S_C12)
    e("s_mov_b32 s%d, 0" % S_BN)
    e("s_lshl_b32 s%d, s%d, 7" % (S_T0, S_W))
    e("s_add_u32 s%d, s%d, s%d" % (SRD_X, S_PX, S_T0))
    e("s_addc_u32 s%d, s%d, 0" % (SRD_X + 1, S_PX + 1))
    e("s_mov_b32 s%d, 128" % (SRD_X + 2))
    e("s_mov_b32 s%d, 0x00020000" % (SRD_X + 3))
    e("s_lshl_b32 s%d, s%d, 8" % (S_T0, S_H))
    e("s_lshl_b32 s%d, s%d, 19" % (S_T1, S_W))
    e("s_add_u32 s%d, s%d, s%d" % (S_T0, S_T0, S_T1))
    e("s_add_u32 s%d, s%d, s%d" % (SRD_WQ, S_PWQ, S_T0))
    e("s_addc_u32 s%d, s%d, 0" % (SRD_WQ + 1, S_PWQ + 1))
    e("s_mov_b32 s%d, %d" % (SRD_WQ + 2, 63 * 8192 + 256))
    e("s_mov_b32 s%d, 0x00020000" % (SRD_WQ + 3))
    e("buffer_load_ushort v%d, v7, s[%d:%d], 0 offen" % (V_X, SRD_X, SRD_X + 3))
    e("s_mov_b32 s%d, 0" % S_T0)
    for i in range(16):
        e("buffer_load_dwordx4 v[%d:%d], v%d, s[%d:%d], s%d offen%s" %
          (V_WQ + 4 * i, V_WQ + 4 * i + 3, V_WQOFF, SRD_WQ, SRD_WQ + 3, S_T0, NTW))
        if i != 15:
            e("s_add_u32 s%d, s%d, 32768" % (S_T0, S_T0))
    e("s_lshl_b32 s%d, s%d, 21" % (S_T0, S_H))
    e("s_lshl_b32 s%d, s%d, 19" % (S_T1, S_SPLIT))
    e("s_add_u32 s%d, s%d, s%d" % (S_T0, S_T0, S_T1))
    e("s_lshl_b32 s%d, s%d, %d" % (S_T1, S_W, 10 + LGB))
    e("s_add_u32 s%d, s%d, s%d" % (S_T0, S_T0, S_T1))
    e("s_add_u32 s%d, s%d, s%d" % (S_KB, S_PK, S_T0))
    e("s_addc_u32 s%d, s%d, 0" % (S_KB + 1, S_PK + 1))
    e("s_add_u32 s%d, s%d, s%d" % (S_VB, S_PV, S_T0))
    e("s_addc_u32 s%d, s%d, 0" % (S_VB + 1, S_PV + 1))
    e("s_mov_b32 s%d, 0x00020000" % (SRD_PF + 3))
    e("s_barrier")
    for n in range(NPRO):
        if n % BLK == 0:
            set_block()
        ld_tile(V_RING + 4 * n, SRD_PF, n % BLK, V_OFF16, NT)
    e("s_load_dwordx4 s[8:11], s[0:1], 80")
    e("s_lshl_b32 s%d, s%d, 17" % (S_T0, S_H))
    e("s_lshl_b32 s%d, s%d, 14" % (S_T1, S_W))
    e("s_add_u32 s%d, s%d, s%d" % (S_T0, S_T0, S_T1))
    e("s_add_u32 s%d, s%d, s%d" % (SRD_WO, S_PWO, S_T0))
    e("s_addc_u32 s%d, s%d, 0" % (SRD_WO + 1, S_PWO + 1))
    e("s_mov_b32 s%d, 16384" % (SRD_WO + 2))
    e("s_mov_b32 s%d, 0x00020000" % (SRD_WO + 3))
    e("s_mov_b32 s%d, s36" % SRD_WS)
    e("s_mov_b32 s%d, s37" % (SRD_WS + 1))
    e("s_mov_b32 s%d, %d" % (SRD_WS + 2, 256 * 2048 + 256 * 8))
    e("s_mov_b32 s%d, 0x00020000" % (SRD_WS + 3))
    for i in range(16):
        m = (0x00010001 << i) & 0xffffffff
        e("s_mov_b32 s%d, 0x%08x" % (S_MASK + 2 * i, m))
        e("s_mov_b32 s%d, 0x%08x" % (S_MASK + 2 * i + 1, m))
    for d in range(8):
        e("v_mov_b32 v%d, 0" % (V_ACC + d))
    e("s_waitcnt vmcnt(%d)" % (NPRO + 15))
    e("v_lshlrev_b32 v%d, 16, v%d" % (V_X, V_X))
    e("s_nop 1")
    for i in range(16):
        e("s_waitcnt vmcnt(%d)" % (NPRO + 15 - i))
        fma_tile(V_ACC, V_WQ + 4 * i, V_X, i)
    row_reduce8(V_ACC)
    e("v_lshrrev_b32 v5, 4, v%d" % V_LANE)
    e("v_and_b32 v6, 15, v%d" % V_LANE)
    e("v_lshlrev_b32 v7, 3, v5")
    e("v_lshl_add_u32 v7, v6, 5, v7")
    e("s_lshl_b32 s%d, s%d, 9" % (S_T0, S_W))
    e("v_add_u32 v%d, s%d, v7" % (V_A0, S_T0))
    e("ds_write_b64 v%d, v[%d:%d] offset:%d" % (V_A0, V_ACC, V_ACC + 1, LDS_Q))
    e("s_waitcnt lgkmcnt(0)")
    e("s_barrier")
    e("v_lshlrev_b32 v7, 5, v6")
    for w in range(8):
        e("ds_read_b128 v[%d:%d], v7 offset:%d" % (V_WQ + 8 * w, V_WQ + 8 * w + 3, LDS_Q + w * 512))
        e("ds_read_b128 v[%d:%d], v7 offset:%d" % (V_WQ + 8 * w + 4, V_WQ + 8 * w + 7, LDS_Q + w * 512 + 16))
    e("s_waitcnt lgkmcnt(0)")
    for w in range(1, 8):
        for d in range(8):
            e("v_add_f32 v%d, v%d, v%d" % (V_WQ + d, V_WQ + d, V_WQ + 8 * w + d))
    for r in range(4):
        e("v_cvt_pk_bf16_f32 v%d, v%d, v%d" % (V_Q + r, V_WQ + 2 * r, V_WQ + 2 * r + 1))
    stamp(1)
    e("s_nop 1")
    k_body(True)
    e("s_mov_b32 s%d, 0" % S_CNT)
    e("L_kloop:")
    k_body(False)
    e("s_add_u32 s%d, s%d, 1" % (S_CNT, S_CNT))
    e("s_cmp_lt_u32 s%d, 3" % S_CNT)
    e("s_cbranch_scc1 L_kloop")
    stamp(2)
    e("v_max_f32 v%d, v%d, v%d" % (V_M, V_SC, V_SC + 1))
    e("v_max3_f32 v%d, v%d, v%d, v%d" % (V_M, V_M, V_SC + 2, V_SC + 3))
    wave_allreduce("v_max_f32", V_M)
    for t in range(4):
        e("v_sub_f32 v%d, v%d, v%d" % (V_SC + t, V_SC + t, V_M))
    for t in range(4):
        e("v_mul_f32 v%d, s%d, v%d" % (V_SC + t, S_LOG2E, V_SC + t))
    for t in range(4):
        e("v_exp_f32 v%d, v%d" % (V_SC + t, V_SC + t))
    e("s_nop 0")
    e("v_add_f32 v%d, v%d, v%d" % (V_L, V_SC, V_SC + 1))
    e("v_add_f32 v%d, v%d, v%d" % (V_L, V_L, V_SC + 2))
    e("v_add_f32 v%d, v%d, v%d" % (V_L, V_L, V_SC + 3))
    wave_allreduce("v_add_f32", V_L)
    e("s_lshl_b32 s%d, s%d, 3" % (S_T0, S_W))
    e("v_mov_b32 v5, s%d" % S_T0)
    e("s_mov_b64 exec, 1")
    e("ds_write_b64 v5, v[%d:%d] offset:%d" % (V_M, V_L, LDS_ML))
    e("s_mov_b64 exec, -1")
    for d in range(8):
        e("v_mov_b32 v%d, 0" % (V_ACC + d))
    if not NOUNP:
        e("s_waitcnt vmcnt(%d)" % (4 if EARLY else NPRO))
        for r in range(16):
            for k in range(4):
                unpack(V_U + 8 * r + 2 * k, V_U + 8 * r + 2 * k + 1, V_WO + 4 * r + k)
    e("s_mov_b32 s%d, 0" % S_CNT)
    e("L_vloop:")
    for g in range(16 // G):
        n0 = G * g
        if EARLY:
            set_block()
            e("s_waitcnt vmcnt(0)")
            for a in range(4):
                ld_tile(V_RING + 4 * ((n0 + 4 + a) % 8), SRD_PF, a, V_OFF16, NT)
            for a in range(4):
                fma_tile(V_ACC, V_RING + 4 * ((n0 + a) % 8), V_SC, n0 + a)
            continue
        e("s_waitcnt vmcnt(%d)" % WT)
        for a in range(G):
            fma_tile(V_ACC, V_RING + 4 * ((n0 + a) % D), V_SC, n0 + a)
        if (n0 + D) % BLK == 0:
            set_block()
        for a in range(G):
            ld_tile(V_RING + 4 * ((n0 + a) % D), SRD_PF, (n0 + a + D) % BLK, V_OFF16, NT)
    e("v_mov_b32 v%d, v%d" % (V_SC, V_SC + 1))
    e("v_mov_b32 v%d, v%d" % (V_SC + 1, V_SC + 2))
    e("v_mov_b32 v%d, v%d" % (V_SC + 2, V_SC + 3))
    e("s_add_u32 s%d, s%d, 1" % (S_CNT, S_CNT))
    e("s_cmp_lt_u32 s%d, 4" % S_CNT)
    e("s_cbranch_scc1 L_vloop")
    stamp(3)
    row_reduce8(V_ACC)
    e("ds_write_b64 v%d, v[%d:%d] offset:%d" % (V_A0, V_ACC, V_ACC + 1, LDS_O))
    e("v_mov_b32 v5, 0")
    e("s_lshl_b32 s%d, s%d, 6" % (S_T0, S_W))
    e("v_lshl_add_u32 v7, v6, 2, s%d" % S_T0)
    e("s_waitcnt lgkmcnt(0)")
    e("s_barrier")
    if EPI: stamp(5)
    ML = V_ML
    OP = V_OP
    for i in range(4):
        e("ds_read_b128 v[%d:%d], v5 offset:%d" % (ML + 4 * i, ML + 4 * i + 3, LDS_ML + 16 * i))
    for w in range(8):
        e("ds_read_b32 v%d, v7 offset:%d" % (OP + w, LDS_O + 512 * w))
    e("s_waitcnt lgkmcnt(8)")
    e("v_max3_f32 v%d, v%d, v%d, v%d" % (V_M, ML + 0, ML + 2, ML + 4))
    e("v_max3_f32 v%d, v%d, v%d, v%d" % (V_M, V_M, ML + 6, ML + 8))
    e("v_max3_f32 v%d, v%d, v%d, v%d" % (V_M, V_M, ML + 10, ML + 12))
    e("v_max_f32 v%d, v%d, v%d" % (V_M, V_M, ML + 14))
    for w in range(8):
        e("v_sub_f32 v%d, v%d, v%d" % (ML + 2 * w, ML + 2 * w, V_M))
    for w in range(8):
        e("v_mul_f32 v%d, s%d, v%d" % (ML + 2 * w, S_LOG2E, ML + 2 * w))
    for w in range(8):
        e("v_exp_f32 v%d, v%d" % (ML + 2 * w, ML + 2 * w))
    e("s_waitcnt lgkmcnt(0)")
    VO = V_SC
    e("v_mul_f32 v%d, v%d, v%d" % (VO, ML, OP))
    for w in range(1, 8):
        e("v_fmac_f32 v%d, v%d, v%d" % (VO, ML + 2 * w, OP + w))
    e("v_mul_f32 v%d, v%d, v%d" % (V_L, ML, ML + 1))
    for w in range(1, 8):
        e("v_fmac_f32 v%d, v%d, v%d" % (V_L, ML + 2 * w, ML + 2 * w + 1))
    if NOUNP:
        for d in range(8):
            e("v_mov_b32 v%d, 0" % (V_ACC + d))
        for r in range(16):
            fma_tile(V_ACC, V_WO + 4 * r, VO, r)
    else:
      for r in range(16):
        for d in range(8):
            if r == 0:
                e("v_mul_f32_dpp v%d, v%d, v%d row_newbcast:%d%s" % (V_ACC + d, VO, V_U + 8 * r + d, r, DPP))
            else:
                e("v_fmac_f32_dpp v%d, v%d, v%d row_newbcast:%d%s" % (V_ACC + d, VO, V_U + 8 * r + d, r, DPP))
    if EPI: stamp(6)
    e("s_lshl_b32 s%d, s%d, 11" % (S_T0, S_W))
    e("v_lshl_add_u32 v5, v%d, 5, s%d" % (V_LANE, S_T0))
    e("ds_write_b128 v5, v[%d:%d] offset:%d" % (V_ACC, V_ACC + 3, LDS_Y))
    e("ds_write_b128 v5, v[%d:%d] offset:%d" % (V_ACC + 4, V_ACC + 7, LDS_Y + 16))
    e("v_lshlrev_b32 v5, 4, v0")
    e("s_waitcnt vmcnt(0) lgkmcnt(0)")
    e("s_barrier")
    if EPI: stamp(7)
    e("s_cmp_ge_u32 s%d, 2" % S_W)
    e("s_cbranch_scc1 L_stored")
    YR = V_RING
    for w in range(8):
        e("ds_read_b128 v[%d:%d], v5 offset:%d" % (YR + 4 * w, YR + 4 * w + 3, LDS_Y + 2048 * w))
    e("s_lshl_b32 s%d, s2, 11" % S_T0)
    e("s_lshl_b32 s%d, s2, 3" % S_T1)
    e("s_add_u32 s%d, s%d, %d" % (S_T1, S_T1, 256 * 2048))
    e("s_waitcnt lgkmcnt(0)")
    for w in range(1, 8):
        for d in range(4):
            e("v_add_f32 v%d, v%d, v%d" % (YR + d, YR + d, YR + 4 * w + d))
    e("buffer_store_dwordx4 v[%d:%d], v5, s[%d:%d], s%d offen sc1" % (YR, YR + 3, SRD_WS, SRD_WS + 3, S_T0))
    e("s_cmp_lg_u32 s%d, 0" % S_W)
    e("s_cbranch_scc1 L_stored")
    e("s_mov_b64 exec, 1")
    e("buffer_store_dwordx2 v[%d:%d], v5, s[%d:%d], s%d offen sc1" % (V_M, V_L, SRD_WS, SRD_WS + 3, S_T1))
    e("s_mov_b64 exec, -1")
    e("L_stored:")
    e("s_mov_b32 s%d, s%d" % (SRD_DBG, S_PDBG))
    e("s_mov_b32 s%d, s%d" % (SRD_DBG + 1, S_PDBG + 1))
    e("s_mov_b32 s%d, 256" % (SRD_DBG + 2))
    e("s_mov_b32 s%d, 0x00020000" % (SRD_DBG + 3))
    e("s_mov_b32 s%d, s%d" % (SRD_OUT, S_POUT))
    e("s_mov_b32 s%d, s%d" % (SRD_OUT + 1, S_POUT + 1))
    e("s_mov_b32 s%d, 2048" % (SRD_OUT + 2))
    e("s_mov_b32 s%d, 0x00020000" % (SRD_OUT + 3))
    e("v_mov_b32 v5, 0")
    e("s_waitcnt vmcnt(0)")
    e("s_barrier")
    stamp(4)
    e("s_cmp_lg_u32 s%d, 0" % S_W)
    e("s_cbranch_scc1 L_wait_role")
    if STAMP:
        e("s_mov_b32 s%d, %d" % (SRD_WS + 2, 2 << 20))
        e("s_lshl_b32 s%d, s2, 6" % S_T0)
        e("s_add_u32 s%d, s%d, %d" % (S_T0, S_T0, 1 << 20))
        e("s_mov_b64 exec, 1")
        for k in range(8):
            e("v_mov_b32 v8, s%d" % (STR[k]))
            e("v_mov_b32 v9, s%d" % (STR[k] + 1))
            e("buffer_store_dwordx2 v[8:9], v5, s[%d:%d], s%d offen offset:%d" % (SRD_WS, SRD_WS + 3, S_T0, 8 * k))
            e("s_nop 2")
        e("s_mov_b64 exec, -1")
    e("v_mov_b32 v7, 1")
    e("s_mov_b64 exec, 1")
    e("buffer_atomic_add v7, v5, s[%d:%d], 0 offen sc0" % (SRD_DBG, SRD_DBG + 3))
    e("s_waitcnt vmcnt(0)")
    e("s_mov_b64 exec, -1")
    e("v_readfirstlane_b32 s%d, v7" % S_T0)
    e("s_nop 3")
    e("s_cmp_lt_u32 s%d, %d" % (S_T0, 256 - NRED))
    e("s_cbranch_scc1 L_publish")
    e("s_cmp_eq_u32 s%d, 255" % S_T0)
    e("s_cbranch_scc1 L_publish")
    e("s_mov_b32 s%d, 0" % S_CNT)
    e("L_poll:")
    e("s_mov_b64 exec, 1")
    e("buffer_load_dword v7, v5, s[%d:%d], 0 offen sc1" % (SRD_DBG, SRD_DBG + 3))
    e("s_waitcnt vmcnt(0)")
    e("s_mov_b64 exec, -1")
    e("v_readfirstlane_b32 s%d, v7" % S_T1)
    e("s_nop 3")
    e("s_cmp_ge_u32 s%d, 256" % S_T1)
    e("s_cbranch_scc1 L_publish")
    e("s_add_u32 s%d, s%d, 1" % (S_CNT, S_CNT))
    e("s_cmp_lt_u32 s%d, 0x100000" % S_CNT)
    e("s_cbranch_scc0 L_publish")
    e("s_sleep 1")
    e("s_branch L_poll")
    e("L_publish:")
    if not EPI: stamp(5)
    e("v_mov_b32 v7, s%d" % S_T0)
    e("ds_write_b32 v5, v7 offset:%d" % LDS_ROLE)
    e("s_waitcnt lgkmcnt(0)")
    e("L_wait_role:")
    e("s_barrier")
    e("s_cmp_ge_u32 s%d, 4" % S_W)
    e("s_cbranch_scc1 L_end")
    e("ds_read_b32 v7, v5 offset:%d" % LDS_ROLE)
    e("s_waitcnt lgkmcnt(0)")
    e("v_readfirstlane_b32 s%d, v7" % S_T0)
    e("s_nop 3")
    e("s_cmp_lt_u32 s%d, %d" % (S_T0, 256 - NRED))
    e("s_cbranch_scc1 L_end")
    e("s_sub_u32 s%d, s%d, %d" % (S_T0, S_T0, 256 - NRED))
    e("s_lshr_b32 s%d, s%d, 4" % (S_B, S_T0))
    e("s_and_b32 s%d, s%d, 15" % (S_H, S_T0))
    e("v_lshrrev_b32 v1, 3, v0")
    e("v_and_b32 v2, 7, v0")
    e("s_lshl_b32 s%d, s%d, 5" % (S_T0, S_B))
    e("v_add_u32 v3, s%d, v1" % S_T0)
    e("s_lshl_b32 s%d, s%d, 7" % (S_T1, S_H))
    e("v_lshl_add_u32 v4, v2, 4, s%d" % S_T1)
    e("v_lshl_add_u32 v4, v3, 11, v4")
    e("v_lshlrev_b32 v5, 3, v3")
    for s in range(4):
        e("s_mov_b32 s%d, %d" % (16 + s, 256 * 2048 + s * 64 * 8))
        e("s_mov_b32 s%d, %d" % (20 + s, s * 64 * 2048))
    for s in range(4):
        e("buffer_load_dwordx2 v[%d:%d], v5, s[%d:%d], s%d offen sc1" % (8 + 2 * s, 9 + 2 * s, SRD_WS, SRD_WS + 3, 16 + s))
    for s in range(4):
        e("buffer_load_dwordx4 v[%d:%d], v4, s[%d:%d], s%d offen sc1" % (16 + 4 * s, 19 + 4 * s, SRD_WS, SRD_WS + 3, 20 + s))
    e("s_waitcnt vmcnt(4)")
    e("v_max3_f32 v6, v8, v10, v12")
    e("v_max_f32 v6, v6, v14")
    for s in range(4):
        e("v_sub_f32 v%d, v%d, v6" % (8 + 2 * s, 8 + 2 * s))
    for s in range(4):
        e("v_mul_f32 v%d, s%d, v%d" % (8 + 2 * s, S_LOG2E, 8 + 2 * s))
    for s in range(4):
        e("v_exp_f32 v%d, v%d" % (8 + 2 * s, 8 + 2 * s))
    e("s_nop 0")
    e("v_mul_f32 v7, v8, v9")
    for s in range(1, 4):
        e("v_fmac_f32 v7, v%d, v%d" % (8 + 2 * s, 9 + 2 * s))
    e("v_rcp_f32 v7, v7")
    e("s_nop 0")
    for s in range(4):
        e("v_mul_f32 v%d, v%d, v7" % (8 + 2 * s, 8 + 2 * s))
    e("s_waitcnt vmcnt(0)")
    if not EPI: stamp(6)
    for d in range(4):
        e("v_mul_f32 v%d, v8, v%d" % (32 + d, 16 + d))
    for s in range(1, 4):
        for d in range(4):
            e("v_fmac_f32 v%d, v%d, v%d" % (32 + d, 8 + 2 * s, 16 + 4 * s + d))
    e("s_nop 1")
    for d in range(4):
        e("v_add_f32_dpp v%d, v%d, v%d row_ror:8%s" % (32 + d, 32 + d, 32 + d, DPP))
    e("v_lshrrev_b32 v6, 4, v0")
    e("v_lshlrev_b32 v6, 7, v6")
    e("v_lshl_add_u32 v6, v2, 4, v6")
    e("ds_write_b128 v6, v[32:35] offset:%d" % LDS_R)
    e("s_waitcnt lgkmcnt(0)")
    e("s_barrier")
    e("s_cmp_lg_u32 s%d, 0" % S_W)
    e("s_cbranch_scc1 L_end")
    e("v_lshlrev_b32 v6, 3, v0")
    e("v_lshlrev_b32 v7, 2, v0")
    e("s_mov_b64 exec, 0xffff")
    for r in range(16):
        e("ds_read_b64 v[%d:%d], v6 offset:%d" % (8 + 2 * r, 9 + 2 * r, LDS_R + 128 * r))
    e("s_lshl_b32 s%d, s%d, 10" % (S_T0, S_B))
    e("s_lshl_b32 s%d, s%d, 6" % (S_T1, S_H))
    e("s_add_u32 s%d, s%d, s%d" % (S_T0, S_T0, S_T1))
    e("s_waitcnt lgkmcnt(0)")
    for r in range(1, 16):
        e("v_add_f32 v8, v8, v%d" % (8 + 2 * r))
        e("v_add_f32 v9, v9, v%d" % (9 + 2 * r))
    e("v_cvt_pk_bf16_f32 v8, v8, v9")
    e("buffer_store_dword v8, v7, s[%d:%d], s%d offen" % (SRD_OUT, SRD_OUT + 3, S_T0))
    if STAMP and not EPI:
        e("s_waitcnt vmcnt(0)")
        stamp(7)
        e("s_lshl_b32 s%d, s2, 6" % S_T0)
        e("s_add_u32 s%d, s%d, %d" % (S_T0, S_T0, 1 << 20))
        e("s_mov_b64 exec, 1")
        e("v_mov_b32 v5, 0")
        for k in (5, 6, 7):
            e("v_mov_b32 v8, s%d" % (STR[k]))
            e("v_mov_b32 v9, s%d" % (STR[k] + 1))
            e("buffer_store_dwordx2 v[8:9], v5, s[%d:%d], s%d offen offset:%d" % (SRD_WS, SRD_WS + 3, S_T0, 8 * k))
            e("s_nop 2")
    e("L_end:")
    e("s_endpgm")

def kd(name, vgpr, sgpr):
    return """.amdhsa_kernel %s
  .amdhsa_next_free_vgpr %d
  .amdhsa_next_free_sgpr %d
  .amdhsa_accum_offset %d
  .amdhsa_group_segment_fixed_size 0
  .amdhsa_kernarg_size 104
  .amdhsa_user_sgpr_count 2
  .amdhsa_user_sgpr_kernarg_segment_ptr 1
  .amdhsa_system_sgpr_workgroup_id_x 1
  .amdhsa_float_denorm_mode_32 3
.end_amdhsa_kernel
""" % (name, vgpr, sgpr, (vgpr + 3) // 4 * 4)

k1()
txt = HEADER + "\n".join(L) + "\n" + '.section .rodata,"a"\n.p2align 6\n' + kd(KN, 256, 102)
open(OUT, "w").write(txt)
print("wrote", OUT, len(L), "lines")
```

```python
import sys, os

NAME = "concat_heads__mha_block_cached__gqa_block_cached__decode"
KN = NAME + "_kernel"
OUT = sys.argv[1] if len(sys.argv) > 1 else "cdna_kernels/%s.s" % NAME
NT = " nt"
NTW = " nt"
D = int(os.environ.get("D", "8"))
G = int(os.environ.get("G", "4"))
WT = int(os.environ.get("W", str(D - G)))
assert WT <= D - G
STAMP = os.environ.get("STAMP", "") == "1"
NRED = 32
EPI = os.environ.get("EPI", "") == "1"
EARLY = os.environ.get("EARLY", "") == "1"
BLK = int(os.environ.get("BLK", "8"))
NB = 64 // BLK
NPRO = int(os.environ.get("NPRO", "4")) if os.environ.get("EARLY", "") == "1" else D
LGB = BLK.bit_length() - 1

HEADER = """; Kernarg layout for this problem (104 bytes, ptrs only, base s[0:1]):
; @launch grid=(256,1,1) block=(512,1,1) lds=28672
.amdgcn_target "amdgcn-amd-amdhsa--gfx950"
.text
"""

L = []
def e(s=""):
    L.append("    " + s if s and not s.endswith(":") else s)

DPP = " row_mask:0xf bank_mask:0xf"

S_W = 3; S_H64 = 4; S_SPLIT = 5; S_B = 6; S_H = 7
S_PX = 8; S_PK = 10; S_PV = 12; S_PWQ = 14
S_POUT = 8; S_PDBG = 10
S_PWO = 38
SRD_PF = 40
SRD_WQ = 44
SRD_OUT = 44
SRD_WO = 48
SRD_DBG = 48
SRD_X = 52
SRD_WS = 56
S_KB = 60
S_VB = 62
S_C4 = 64
S_LOG2E = 65; S_SCALE = 66; S_T0 = 67; S_T1 = 68; S_CNT = 69
S_MASK = 70
S_R0 = 16
S_BN = 20
S_C8 = 21; S_C12 = 22; S_T2 = 23

V_LANE = 1
V_OFF16 = 2
V_WQOFF = 3
V_X = 4
V_Q = 8
V_SC = 12
V_SCN = 16
V_P = 20
V_T = 24
V_ACC = 32
V_M = 40
V_L = 41
V_A0 = 42
V_OP = 44
V_RING = 64
NOUNP = D > 8
V_ML = 128 if NOUNP else 96
V_U = 112
V_WQ = 128
V_WO = 192

LDS_Q = 0
LDS_O = 4096
LDS_ML = 8192
LDS_ROLE = 8320
LDS_Y = 8448
LDS_R = 24832

STR = [24, 26, 28, 30, 32, 34, 12, 14]
def stamp(k):
    if STAMP:
        e("s_memrealtime s[%d:%d]" % (STR[k], STR[k] + 1))
        e("s_waitcnt lgkmcnt(0)")

def unpack(dst_lo, dst_hi, src):
    e("v_lshlrev_b32 v%d, 16, v%d" % (dst_lo, src))
    e("v_and_b32 v%d, 0xffff0000, v%d" % (dst_hi, src))

def fma_tile(acc, tile, vsrc, lane):
    for r in range(4):
        unpack(V_T + 2 * r, V_T + 2 * r + 1, tile + r)
    for d in range(8):
        e("v_fmac_f32_dpp v%d, v%d, v%d row_newbcast:%d%s" % (acc + d, vsrc, V_T + d, lane, DPP))

def row_reduce8(acc):
    e("s_nop 1")
    for d in range(4):
        e("v_permlane32_swap_b32 v%d, v%d" % (acc + d, acc + d + 4))
    e("s_nop 1")
    for d in range(4):
        e("v_add_f32 v%d, v%d, v%d" % (acc + d, acc + d, acc + d + 4))
    e("s_nop 1")
    for d in range(2):
        e("v_permlane16_swap_b32 v%d, v%d" % (acc + d, acc + d + 2))
    e("s_nop 1")
    for d in range(2):
        e("v_add_f32 v%d, v%d, v%d" % (acc + d, acc + d, acc + d + 2))

def wave_allreduce(op, v):
    for r in (8, 4, 2, 1):
        e("s_nop 1")
        e("%s_dpp v%d, v%d, v%d row_ror:%d%s" % (op, v, v, v, r, DPP))
    e("s_nop 1")
    for i in range(4):
        e("v_readlane_b32 s%d, v%d, %d" % (S_R0 + i, v, 16 * i))
    e("s_nop 1")
    e("v_mov_b32 v%d, s%d" % (v, S_R0))
    for i in range(1, 4):
        e("%s v%d, s%d, v%d" % (op, v, S_R0 + i, v))

def ld_tile(dst, srd, i, voff, nt=""):
    soff = ["0", "s%d" % S_C4, "s%d" % S_C8, "s%d" % S_C12][i // 4]
    e("buffer_load_dwordx4 v[%d:%d], v%d, s[%d:%d], %s offen offset:%d%s" %
      (dst, dst + 3, voff, srd, srd + 3, soff, (i % 4) * 1024, nt))

def set_block():
    e("s_and_b32 s%d, s%d, %d" % (S_T0, S_BN, NB - 1))
    e("s_lshl_b32 s%d, s%d, %d" % (S_T0, S_T0, 13 + LGB))
    e("s_cmp_lt_u32 s%d, %d" % (S_BN, NB))
    e("s_cselect_b64 s[%d:%d], s[%d:%d], s[%d:%d]" % (SRD_PF, SRD_PF + 1, S_KB, S_KB + 1, S_VB, S_VB + 1))
    e("s_add_u32 s%d, s%d, s%d" % (SRD_PF, SRD_PF, S_T0))
    e("s_addc_u32 s%d, s%d, 0" % (SRD_PF + 1, SRD_PF + 1))
    e("s_cmp_lt_u32 s%d, %d" % (S_BN, 2 * NB))
    e("s_cselect_b32 s%d, %d, 0" % (SRD_PF + 2, BLK * 1024))
    e("s_add_u32 s%d, s%d, 1" % (S_BN, S_BN))

def k_body(first):
    if EARLY:
        for g in range(4):
            n0 = 4 * g
            if first:
                order = [("K", n) for n in range(NPRO)]
                for gg in range(g):
                    order += [("W", 4 * gg + a) for a in range(4)]
                    if 4 * gg + 4 >= NPRO:
                        order += [("K", 4 * gg + 4 + a) for a in range(4)]
                issue = n0 + 4 >= NPRO
                if issue:
                    set_block()
                    e("s_waitcnt vmcnt(0)")
                else:
                    e("s_waitcnt vmcnt(%d)" % (len(order) - 1 - order.index(("K", n0 + 3))))
                for a in range(4):
                    ld_tile(V_WO + 4 * (n0 + a), SRD_WO, n0 + a, V_OFF16, NTW)
                if issue:
                    for a in range(4):
                        ld_tile(V_RING + 4 * ((n0 + 4 + a) % 8), SRD_PF, a, V_OFF16, NT)
                slot = lambda n: n if n < NPRO else n % 8
            else:
                set_block()
                e("s_waitcnt vmcnt(0)")
                for a in range(4):
                    ld_tile(V_RING + 4 * ((n0 + 4 + a) % 8), SRD_PF, a, V_OFF16, NT)
                slot = lambda n: n % 8
            for r in range(4):
                for a in range(4):
                    t = V_RING + 4 * slot(n0 + a) + r
                    if r == 0:
                        e("v_dot2_f32_bf16 v%d, v%d, v%d, 0" % (V_P + a, t, V_Q + r))
                    else:
                        e("v_dot2_f32_bf16 v%d, v%d, v%d, v%d" % (V_P + a, t, V_Q + r, V_P + a))
            for ror in (8, 4, 2, 1):
                for a in range(4):
                    e("v_add_f32_dpp v%d, v%d, v%d row_ror:%d%s" % (V_P + a, V_P + a, V_P + a, ror, DPP))
            for a in range(4):
                i = n0 + a
                e("v_cndmask_b32 v%d, v%d, v%d, s[%d:%d]" % (V_SCN, V_SCN, V_P + a, S_MASK + 2 * i, S_MASK + 2 * i + 1))
    else:
        k_body_std(first)
    k_tail()

def k_body_std(first):
    NG = 16 // G
    for g in range(NG):
        n0 = G * g
        if first:
            order = [("K", n) for n in range(D)]
            for gg in range(g):
                order += [("W", G * gg + a) for a in range(G)] + [("K", G * gg + D + a) for a in range(G)]
            idx = order.index(("K", n0 + G - 1))
            w = len(order) - 1 - idx
            lastk = D - 1 + G * g
            cut = lastk - WT
            if cut >= 0:
                w = min(w, len(order) - 1 - order.index(("K", cut)))
        else:
            w = WT
        e("s_waitcnt vmcnt(%d)" % w)
        for r in range(4):
            for a in range(G):
                t = V_RING + 4 * ((n0 + a) % D) + r
                if r == 0:
                    e("v_dot2_f32_bf16 v%d, v%d, v%d, 0" % (V_P + a, t, V_Q + r))
                else:
                    e("v_dot2_f32_bf16 v%d, v%d, v%d, v%d" % (V_P + a, t, V_Q + r, V_P + a))
        if first:
            for a in range(G):
                ld_tile(V_WO + 4 * (n0 + a), SRD_WO, n0 + a, V_OFF16, NTW)
        if (n0 + D) % BLK == 0:
            set_block()
        for a in range(G):
            ld_tile(V_RING + 4 * ((n0 + a) % D), SRD_PF, (n0 + a + D) % BLK, V_OFF16, NT)
        for ror in (8, 4, 2, 1):
            if G == 2:
                e("s_nop 0")
            for a in range(G):
                e("v_add_f32_dpp v%d, v%d, v%d row_ror:%d%s" % (V_P + a, V_P + a, V_P + a, ror, DPP))
        for a in range(G):
            i = n0 + a
            e("v_cndmask_b32 v%d, v%d, v%d, s[%d:%d]" % (V_SCN, V_SCN, V_P + a, S_MASK + 2 * i, S_MASK + 2 * i + 1))

def k_tail():
    e("v_mov_b32 v%d, v%d" % (V_SC, V_SC + 1))
    e("v_mov_b32 v%d, v%d" % (V_SC + 1, V_SC + 2))
    e("v_mov_b32 v%d, v%d" % (V_SC + 2, V_SC + 3))
    e("v_cvt_pk_bf16_f32 v%d, v%d, v%d" % (V_T, V_SCN, V_SCN))
    e("v_lshlrev_b32 v%d, 16, v%d" % (V_T, V_T))
    e("v_mul_f32 v%d, s%d, v%d" % (V_T, S_SCALE, V_T))
    e("v_cvt_pk_bf16_f32 v%d, v%d, v%d" % (V_T, V_T, V_T))
    e("v_lshlrev_b32 v%d, 16, v%d" % (V_SC + 3, V_T))

def k1():
    e(".globl %s" % KN)
    e(".p2align 8")
    e(".type %s,@function" % KN)
    e("%s:" % KN)
    e("s_cmp_ge_u32 s2, 256")
    e("s_cbranch_scc1 L_end")
    e("s_load_dwordx16 s[16:31], s[0:1], 0")
    e("s_load_dwordx4 s[32:35], s[0:1], 64")
    e("s_load_dwordx2 s[36:37], s[0:1], 96")
    e("v_lshrrev_b32 v5, 6, v0")
    e("v_and_b32 v%d, 63, v0" % V_LANE)
    e("s_nop 0")
    e("v_readfirstlane_b32 s%d, v5" % S_W)
    if os.environ.get("BADMAP"):
        e("s_lshr_b32 s%d, s2, 2" % S_H64)
        e("s_and_b32 s%d, s2, 3" % S_SPLIT)
        e("s_lshl_b32 s2, s%d, 6" % S_SPLIT)
        e("s_add_u32 s2, s2, s%d" % S_H64)
    elif os.environ.get("MAP2"):
        e("s_and_b32 s%d, s2, 7" % S_H64)
        e("s_lshl_b32 s%d, s%d, 3" % (S_H64, S_H64))
        e("s_bfe_u32 s%d, s2, 0x30003" % S_SPLIT)
        e("s_add_u32 s%d, s%d, s%d" % (S_H64, S_H64, S_SPLIT))
        e("s_lshr_b32 s%d, s2, 6" % S_SPLIT)
        e("s_mov_b32 s%d, s2" % S_T2)
        e("s_lshl_b32 s2, s%d, 6" % S_SPLIT)
        e("s_add_u32 s2, s2, s%d" % S_H64)
    else:
        e("s_and_b32 s%d, s2, 63" % S_H64)
        e("s_lshr_b32 s%d, s2, 6" % S_SPLIT)
    e("s_lshr_b32 s%d, s%d, 5" % (S_B, S_H64))
    e("s_and_b32 s%d, s%d, 31" % (S_H, S_H64))
    e("v_lshlrev_b32 v%d, 4, v%d" % (V_OFF16, V_LANE))
    e("v_lshrrev_b32 v5, 4, v%d" % V_LANE)
    e("v_and_b32 v6, 15, v%d" % V_LANE)
    e("v_lshlrev_b32 v7, 13, v5")
    e("v_lshl_add_u32 v%d, v6, 4, v7" % V_WQOFF)
    e("v_lshl_add_u32 v7, v6, 2, v5")
    e("v_lshlrev_b32 v7, 1, v7")
    e("s_mov_b32 s%d, 4096" % S_C4)
    e("s_mov_b32 s%d, 0x3fb8aa3b" % S_LOG2E)
    e("s_mov_b32 s%d, 0x3db504f3" % S_SCALE)
    e("s_waitcnt lgkmcnt(0)")
    e("s_cmp_eq_u32 s%d, 0" % S_B)
    e("s_cselect_b64 s[%d:%d], s[16:17], s[26:27]" % (S_PX, S_PX + 1))
    e("s_cselect_b64 s[%d:%d], s[18:19], s[28:29]" % (S_PK, S_PK + 1))
    e("s_cselect_b64 s[%d:%d], s[20:21], s[30:31]" % (S_PV, S_PV + 1))
    e("s_cselect_b64 s[%d:%d], s[22:23], s[32:33]" % (S_PWQ, S_PWQ + 1))
    e("s_cselect_b64 s[%d:%d], s[24:25], s[34:35]" % (S_PWO, S_PWO + 1))
    stamp(0)
    if STAMP:
        e("s_mov_b64 s[34:35], 0")
    e("s_mov_b32 s%d, 8192" % S_C8)
    e("s_mov_b32 s%d, 12288" % S_C12)
    e("s_mov_b32 s%d, 0" % S_BN)
    e("s_lshl_b32 s%d, s%d, 7" % (S_T0, S_W))
    e("s_add_u32 s%d, s%d, s%d" % (SRD_X, S_PX, S_T0))
    e("s_addc_u32 s%d, s%d, 0" % (SRD_X + 1, S_PX + 1))
    e("s_mov_b32 s%d, 128" % (SRD_X + 2))
    e("s_mov_b32 s%d, 0x00020000" % (SRD_X + 3))
    e("s_lshl_b32 s%d, s%d, 8" % (S_T0, S_H))
    e("s_lshl_b32 s%d, s%d, 19" % (S_T1, S_W))
    e("s_add_u32 s%d, s%d, s%d" % (S_T0, S_T0, S_T1))
    e("s_add_u32 s%d, s%d, s%d" % (SRD_WQ, S_PWQ, S_T0))
    e("s_addc_u32 s%d, s%d, 0" % (SRD_WQ + 1, S_PWQ + 1))
    e("s_mov_b32 s%d, %d" % (SRD_WQ + 2, 63 * 8192 + 256))
    e("s_mov_b32 s%d, 0x00020000" % (SRD_WQ + 3))
    e("buffer_load_ushort v%d, v7, s[%d:%d], 0 offen" % (V_X, SRD_X, SRD_X + 3))
    e("s_mov_b32 s%d, 0" % S_T0)
    for i in range(16):
        e("buffer_load_dwordx4 v[%d:%d], v%d, s[%d:%d], s%d offen%s" %
          (V_WQ + 4 * i, V_WQ + 4 * i + 3, V_WQOFF, SRD_WQ, SRD_WQ + 3, S_T0, NTW))
        if i != 15:
            e("s_add_u32 s%d, s%d, 32768" % (S_T0, S_T0))
    e("s_lshl_b32 s%d, s%d, 21" % (S_T0, S_H))
    e("s_lshl_b32 s%d, s%d, 19" % (S_T1, S_SPLIT))
    e("s_add_u32 s%d, s%d, s%d" % (S_T0, S_T0, S_T1))
    e("s_lshl_b32 s%d, s%d, %d" % (S_T1, S_W, 10 + LGB))
    e("s_add_u32 s%d, s%d, s%d" % (S_T0, S_T0, S_T1))
    e("s_add_u32 s%d, s%d, s%d" % (S_KB, S_PK, S_T0))
    e("s_addc_u32 s%d, s%d, 0" % (S_KB + 1, S_PK + 1))
    e("s_add_u32 s%d, s%d, s%d" % (S_VB, S_PV, S_T0))
    e("s_addc_u32 s%d, s%d, 0" % (S_VB + 1, S_PV + 1))
    e("s_mov_b32 s%d, 0x00020000" % (SRD_PF + 3))
    e("s_barrier")
    for n in range(NPRO):
        if n % BLK == 0:
            set_block()
        ld_tile(V_RING + 4 * n, SRD_PF, n % BLK, V_OFF16, NT)
    e("s_load_dwordx4 s[8:11], s[0:1], 80")
    e("s_lshl_b32 s%d, s%d, 17" % (S_T0, S_H))
    e("s_lshl_b32 s%d, s%d, 14" % (S_T1, S_W))
    e("s_add_u32 s%d, s%d, s%d" % (S_T0, S_T0, S_T1))
    e("s_add_u32 s%d, s%d, s%d" % (SRD_WO, S_PWO, S_T0))
    e("s_addc_u32 s%d, s%d, 0" % (SRD_WO + 1, S_PWO + 1))
    e("s_mov_b32 s%d, 16384" % (SRD_WO + 2))
    e("s_mov_b32 s%d, 0x00020000" % (SRD_WO + 3))
    e("s_mov_b32 s%d, s36" % SRD_WS)
    e("s_mov_b32 s%d, s37" % (SRD_WS + 1))
    e("s_mov_b32 s%d, %d" % (SRD_WS + 2, 256 * 2048 + 256 * 8))
    e("s_mov_b32 s%d, 0x00020000" % (SRD_WS + 3))
    for i in range(16):
        m = (0x00010001 << i) & 0xffffffff
        e("s_mov_b32 s%d, 0x%08x" % (S_MASK + 2 * i, m))
        e("s_mov_b32 s%d, 0x%08x" % (S_MASK + 2 * i + 1, m))
    for d in range(8):
        e("v_mov_b32 v%d, 0" % (V_ACC + d))
    e("s_waitcnt vmcnt(%d)" % (NPRO + 15))
    e("v_lshlrev_b32 v%d, 16, v%d" % (V_X, V_X))
    e("s_nop 1")
    for i in range(16):
        e("s_waitcnt vmcnt(%d)" % (NPRO + 15 - i))
        fma_tile(V_ACC, V_WQ + 4 * i, V_X, i)
    row_reduce8(V_ACC)
    e("v_lshrrev_b32 v5, 4, v%d" % V_LANE)
    e("v_and_b32 v6, 15, v%d" % V_LANE)
    e("v_lshlrev_b32 v7, 3, v5")
    e("v_lshl_add_u32 v7, v6, 5, v7")
    e("s_lshl_b32 s%d, s%d, 9" % (S_T0, S_W))
    e("v_add_u32 v%d, s%d, v7" % (V_A0, S_T0))
    e("ds_write_b64 v%d, v[%d:%d] offset:%d" % (V_A0, V_ACC, V_ACC + 1, LDS_Q))
    e("s_waitcnt lgkmcnt(0)")
    e("s_barrier")
    e("v_lshlrev_b32 v7, 5, v6")
    for w in range(8):
        e("ds_read_b128 v[%d:%d], v7 offset:%d" % (V_WQ + 8 * w, V_WQ + 8 * w + 3, LDS_Q + w * 512))
        e("ds_read_b128 v[%d:%d], v7 offset:%d" % (V_WQ + 8 * w + 4, V_WQ + 8 * w + 7, LDS_Q + w * 512 + 16))
    e("s_waitcnt lgkmcnt(0)")
    for w in range(1, 8):
        for d in range(8):
            e("v_add_f32 v%d, v%d, v%d" % (V_WQ + d, V_WQ + d, V_WQ + 8 * w + d))
    for r in range(4):
        e("v_cvt_pk_bf16_f32 v%d, v%d, v%d" % (V_Q + r, V_WQ + 2 * r, V_WQ + 2 * r + 1))
    stamp(1)
    e("s_nop 1")
    k_body(True)
    e("s_mov_b32 s%d, 0" % S_CNT)
    e("L_kloop:")
    k_body(False)
    e("s_add_u32 s%d, s%d, 1" % (S_CNT, S_CNT))
    e("s_cmp_lt_u32 s%d, 3" % S_CNT)
    e("s_cbranch_scc1 L_kloop")
    stamp(2)
    e("v_max_f32 v%d, v%d, v%d" % (V_M, V_SC, V_SC + 1))
    e("v_max3_f32 v%d, v%d, v%d, v%d" % (V_M, V_M, V_SC + 2, V_SC + 3))
    wave_allreduce("v_max_f32", V_M)
    for t in range(4):
        e("v_sub_f32 v%d, v%d, v%d" % (V_SC + t, V_SC + t, V_M))
    for t in range(4):
        e("v_mul_f32 v%d, s%d, v%d" % (V_SC + t, S_LOG2E, V_SC + t))
    for t in range(4):
        e("v_exp_f32 v%d, v%d" % (V_SC + t, V_SC + t))
    e("s_nop 0")
    e("v_add_f32 v%d, v%d, v%d" % (V_L, V_SC, V_SC + 1))
    e("v_add_f32 v%d, v%d, v%d" % (V_L, V_L, V_SC + 2))
    e("v_add_f32 v%d, v%d, v%d" % (V_L, V_L, V_SC + 3))
    wave_allreduce("v_add_f32", V_L)
    e("s_lshl_b32 s%d, s%d, 3" % (S_T0, S_W))
    e("v_mov_b32 v5, s%d" % S_T0)
    e("s_mov_b64 exec, 1")
    e("ds_write_b64 v5, v[%d:%d] offset:%d" % (V_M, V_L, LDS_ML))
    e("s_mov_b64 exec, -1")
    for d in range(8):
        e("v_mov_b32 v%d, 0" % (V_ACC + d))
    if not NOUNP:
        e("s_waitcnt vmcnt(%d)" % (4 if EARLY else NPRO))
        for r in range(16):
            for k in range(4):
                unpack(V_U + 8 * r + 2 * k, V_U + 8 * r + 2 * k + 1, V_WO + 4 * r + k)
    e("s_mov_b32 s%d, 0" % S_CNT)
    e("L_vloop:")
    for g in range(16 // G):
        n0 = G * g
        if EARLY:
            set_block()
            e("s_waitcnt vmcnt(0)")
            for a in range(4):
                ld_tile(V_RING + 4 * ((n0 + 4 + a) % 8), SRD_PF, a, V_OFF16, NT)
            for a in range(4):
                fma_tile(V_ACC, V_RING + 4 * ((n0 + a) % 8), V_SC, n0 + a)
            continue
        e("s_waitcnt vmcnt(%d)" % WT)
        for a in range(G):
            fma_tile(V_ACC, V_RING + 4 * ((n0 + a) % D), V_SC, n0 + a)
        if (n0 + D) % BLK == 0:
            set_block()
        for a in range(G):
            ld_tile(V_RING + 4 * ((n0 + a) % D), SRD_PF, (n0 + a + D) % BLK, V_OFF16, NT)
    e("v_mov_b32 v%d, v%d" % (V_SC, V_SC + 1))
    e("v_mov_b32 v%d, v%d" % (V_SC + 1, V_SC + 2))
    e("v_mov_b32 v%d, v%d" % (V_SC + 2, V_SC + 3))
    e("s_add_u32 s%d, s%d, 1" % (S_CNT, S_CNT))
    e("s_cmp_lt_u32 s%d, 4" % S_CNT)
    e("s_cbranch_scc1 L_vloop")
    stamp(3)
    row_reduce8(V_ACC)
    e("ds_write_b64 v%d, v[%d:%d] offset:%d" % (V_A0, V_ACC, V_ACC + 1, LDS_O))
    e("v_mov_b32 v5, 0")
    e("s_lshl_b32 s%d, s%d, 6" % (S_T0, S_W))
    e("v_lshl_add_u32 v7, v6, 2, s%d" % S_T0)
    e("s_waitcnt lgkmcnt(0)")
    e("s_barrier")
    if EPI: stamp(5)
    ML = V_ML
    OP = V_OP
    for i in range(4):
        e("ds_read_b128 v[%d:%d], v5 offset:%d" % (ML + 4 * i, ML + 4 * i + 3, LDS_ML + 16 * i))
    for w in range(8):
        e("ds_read_b32 v%d, v7 offset:%d" % (OP + w, LDS_O + 512 * w))
    e("s_waitcnt lgkmcnt(8)")
    e("v_max3_f32 v%d, v%d, v%d, v%d" % (V_M, ML + 0, ML + 2, ML + 4))
    e("v_max3_f32 v%d, v%d, v%d, v%d" % (V_M, V_M, ML + 6, ML + 8))
    e("v_max3_f32 v%d, v%d, v%d, v%d" % (V_M, V_M, ML + 10, ML + 12))
    e("v_max_f32 v%d, v%d, v%d" % (V_M, V_M, ML + 14))
    for w in range(8):
        e("v_sub_f32 v%d, v%d, v%d" % (ML + 2 * w, ML + 2 * w, V_M))
    for w in range(8):
        e("v_mul_f32 v%d, s%d, v%d" % (ML + 2 * w, S_LOG2E, ML + 2 * w))
    for w in range(8):
        e("v_exp_f32 v%d, v%d" % (ML + 2 * w, ML + 2 * w))
    e("s_waitcnt lgkmcnt(0)")
    VO = V_SC
    e("v_mul_f32 v%d, v%d, v%d" % (VO, ML, OP))
    for w in range(1, 8):
        e("v_fmac_f32 v%d, v%d, v%d" % (VO, ML + 2 * w, OP + w))
    e("v_mul_f32 v%d, v%d, v%d" % (V_L, ML, ML + 1))
    for w in range(1, 8):
        e("v_fmac_f32 v%d, v%d, v%d" % (V_L, ML + 2 * w, ML + 2 * w + 1))
    if NOUNP:
        for d in range(8):
            e("v_mov_b32 v%d, 0" % (V_ACC + d))
        for r in range(16):
            fma_tile(V_ACC, V_WO + 4 * r, VO, r)
    elif os.environ.get("PK", "") == "1":
        e("s_nop 0")
        for r in range(16):
            e("v_readlane_b32 s%d, v%d, %d" % (S_MASK + r, VO, r))
        e("s_nop 1")
        for r in range(16):
            sp = S_MASK + (r & ~1)
            sel = "op_sel_hi:[1,0,1]" if r % 2 == 0 else "op_sel:[0,1,0] op_sel_hi:[1,1,1]"
            for d in range(0, 8, 2):
                if r == 0:
                    e("v_pk_mul_f32 v[%d:%d], v[%d:%d], s[%d:%d] op_sel_hi:[1,0]" % (V_ACC + d, V_ACC + d + 1, V_U + 8 * r + d, V_U + 8 * r + d + 1, sp, sp + 1))
                else:
                    e("v_pk_fma_f32 v[%d:%d], v[%d:%d], s[%d:%d], v[%d:%d] %s" % (V_ACC + d, V_ACC + d + 1, V_U + 8 * r + d, V_U + 8 * r + d + 1, sp, sp + 1, V_ACC + d, V_ACC + d + 1, sel))
    else:
      for r in range(16):
        for d in range(8):
            if r == 0:
                e("v_mul_f32_dpp v%d, v%d, v%d row_newbcast:%d%s" % (V_ACC + d, VO, V_U + 8 * r + d, r, DPP))
            else:
                e("v_fmac_f32_dpp v%d, v%d, v%d row_newbcast:%d%s" % (V_ACC + d, VO, V_U + 8 * r + d, r, DPP))
    if EPI: stamp(6)
    e("s_lshl_b32 s%d, s%d, 11" % (S_T0, S_W))
    e("v_lshl_add_u32 v5, v%d, 5, s%d" % (V_LANE, S_T0))
    e("ds_write_b128 v5, v[%d:%d] offset:%d" % (V_ACC, V_ACC + 3, LDS_Y))
    e("ds_write_b128 v5, v[%d:%d] offset:%d" % (V_ACC + 4, V_ACC + 7, LDS_Y + 16))
    e("v_lshlrev_b32 v5, 4, v0")
    e("s_waitcnt vmcnt(0) lgkmcnt(0)")
    e("s_barrier")
    if EPI: stamp(7)
    e("s_cmp_ge_u32 s%d, 2" % S_W)
    e("s_cbranch_scc1 L_stored")
    YR = V_RING
    for w in range(8):
        e("ds_read_b128 v[%d:%d], v5 offset:%d" % (YR + 4 * w, YR + 4 * w + 3, LDS_Y + 2048 * w))
    e("s_lshl_b32 s%d, s2, 11" % S_T0)
    e("s_lshl_b32 s%d, s2, 3" % S_T1)
    e("s_add_u32 s%d, s%d, %d" % (S_T1, S_T1, 256 * 2048))
    e("s_waitcnt lgkmcnt(0)")
    for w in range(1, 8):
        for d in range(4):
            e("v_add_f32 v%d, v%d, v%d" % (YR + d, YR + d, YR + 4 * w + d))
    e("buffer_store_dwordx4 v[%d:%d], v5, s[%d:%d], s%d offen sc1" % (YR, YR + 3, SRD_WS, SRD_WS + 3, S_T0))
    e("s_cmp_lg_u32 s%d, 0" % S_W)
    e("s_cbranch_scc1 L_stored")
    e("s_mov_b64 exec, 1")
    e("buffer_store_dwordx2 v[%d:%d], v5, s[%d:%d], s%d offen sc1" % (V_M, V_L, SRD_WS, SRD_WS + 3, S_T1))
    e("s_mov_b64 exec, -1")
    e("L_stored:")
    e("s_mov_b32 s%d, s%d" % (SRD_DBG, S_PDBG))
    e("s_mov_b32 s%d, s%d" % (SRD_DBG + 1, S_PDBG + 1))
    e("s_mov_b32 s%d, 256" % (SRD_DBG + 2))
    e("s_mov_b32 s%d, 0x00020000" % (SRD_DBG + 3))
    e("s_mov_b32 s%d, s%d" % (SRD_OUT, S_POUT))
    e("s_mov_b32 s%d, s%d" % (SRD_OUT + 1, S_POUT + 1))
    e("s_mov_b32 s%d, 2048" % (SRD_OUT + 2))
    e("s_mov_b32 s%d, 0x00020000" % (SRD_OUT + 3))
    e("v_mov_b32 v5, 0")
    e("s_waitcnt vmcnt(0)")
    e("s_barrier")
    stamp(4)
    e("s_cmp_lg_u32 s%d, 0" % S_W)
    e("s_cbranch_scc1 L_wait_role")
    if STAMP:
        e("s_mov_b32 s%d, %d" % (SRD_WS + 2, 2 << 20))
        e("s_lshl_b32 s%d, s2, 6" % S_T0)
        e("s_add_u32 s%d, s%d, %d" % (S_T0, S_T0, 1 << 20))
        e("s_mov_b64 exec, 1")
        for k in range(8):
            e("v_mov_b32 v8, s%d" % (STR[k]))
            e("v_mov_b32 v9, s%d" % (STR[k] + 1))
            e("buffer_store_dwordx2 v[8:9], v5, s[%d:%d], s%d offen offset:%d" % (SRD_WS, SRD_WS + 3, S_T0, 8 * k))
            e("s_nop 2")
        e("s_mov_b64 exec, -1")
    e("v_mov_b32 v7, 1")
    e("s_mov_b64 exec, 1")
    e("buffer_atomic_add v7, v5, s[%d:%d], 0 offen sc0" % (SRD_DBG, SRD_DBG + 3))
    e("s_waitcnt vmcnt(0)")
    e("s_mov_b64 exec, -1")
    e("v_readfirstlane_b32 s%d, v7" % S_T0)
    e("s_nop 3")
    e("s_cmp_lt_u32 s%d, %d" % (S_T0, 256 - NRED))
    e("s_cbranch_scc1 L_publish")
    e("s_cmp_eq_u32 s%d, 255" % S_T0)
    e("s_cbranch_scc1 L_publish")
    e("s_mov_b32 s%d, 0" % S_CNT)
    e("L_poll:")
    e("s_mov_b64 exec, 1")
    e("buffer_load_dword v7, v5, s[%d:%d], 0 offen sc1" % (SRD_DBG, SRD_DBG + 3))
    e("s_waitcnt vmcnt(0)")
    e("s_mov_b64 exec, -1")
    e("v_readfirstlane_b32 s%d, v7" % S_T1)
    e("s_nop 3")
    e("s_cmp_ge_u32 s%d, 256" % S_T1)
    e("s_cbranch_scc1 L_publish")
    e("s_add_u32 s%d, s%d, 1" % (S_CNT, S_CNT))
    e("s_cmp_lt_u32 s%d, 0x100000" % S_CNT)
    e("s_cbranch_scc0 L_publish")
    e("s_sleep 1")
    e("s_branch L_poll")
    e("L_publish:")
    if not EPI: stamp(5)
    e("v_mov_b32 v7, s%d" % S_T0)
    e("ds_write_b32 v5, v7 offset:%d" % LDS_ROLE)
    e("s_waitcnt lgkmcnt(0)")
    e("L_wait_role:")
    e("s_barrier")
    e("s_cmp_ge_u32 s%d, 4" % S_W)
    e("s_cbranch_scc1 L_end")
    e("ds_read_b32 v7, v5 offset:%d" % LDS_ROLE)
    e("s_waitcnt lgkmcnt(0)")
    e("v_readfirstlane_b32 s%d, v7" % S_T0)
    e("s_nop 3")
    e("s_cmp_lt_u32 s%d, %d" % (S_T0, 256 - NRED))
    e("s_cbranch_scc1 L_end")
    e("s_sub_u32 s%d, s%d, %d" % (S_T0, S_T0, 256 - NRED))
    e("s_lshr_b32 s%d, s%d, 4" % (S_B, S_T0))
    e("s_and_b32 s%d, s%d, 15" % (S_H, S_T0))
    e("v_lshrrev_b32 v1, 3, v0")
    e("v_and_b32 v2, 7, v0")
    e("s_lshl_b32 s%d, s%d, 5" % (S_T0, S_B))
    e("v_add_u32 v3, s%d, v1" % S_T0)
    e("s_lshl_b32 s%d, s%d, 7" % (S_T1, S_H))
    e("v_lshl_add_u32 v4, v2, 4, s%d" % S_T1)
    e("v_lshl_add_u32 v4, v3, 11, v4")
    e("v_lshlrev_b32 v5, 3, v3")
    for s in range(4):
        e("s_mov_b32 s%d, %d" % (16 + s, 256 * 2048 + s * 64 * 8))
        e("s_mov_b32 s%d, %d" % (20 + s, s * 64 * 2048))
    for s in range(4):
        e("buffer_load_dwordx2 v[%d:%d], v5, s[%d:%d], s%d offen sc1" % (8 + 2 * s, 9 + 2 * s, SRD_WS, SRD_WS + 3, 16 + s))
    for s in range(4):
        e("buffer_load_dwordx4 v[%d:%d], v4, s[%d:%d], s%d offen sc1" % (16 + 4 * s, 19 + 4 * s, SRD_WS, SRD_WS + 3, 20 + s))
    e("s_waitcnt vmcnt(4)")
    e("v_max3_f32 v6, v8, v10, v12")
    e("v_max_f32 v6, v6, v14")
    for s in range(4):
        e("v_sub_f32 v%d, v%d, v6" % (8 + 2 * s, 8 + 2 * s))
    for s in range(4):
        e("v_mul_f32 v%d, s%d, v%d" % (8 + 2 * s, S_LOG2E, 8 + 2 * s))
    for s in range(4):
        e("v_exp_f32 v%d, v%d" % (8 + 2 * s, 8 + 2 * s))
    e("s_nop 0")
    e("v_mul_f32 v7, v8, v9")
    for s in range(1, 4):
        e("v_fmac_f32 v7, v%d, v%d" % (8 + 2 * s, 9 + 2 * s))
    e("v_rcp_f32 v7, v7")
    e("s_nop 0")
    for s in range(4):
        e("v_mul_f32 v%d, v%d, v7" % (8 + 2 * s, 8 + 2 * s))
    e("s_waitcnt vmcnt(0)")
    if not EPI: stamp(6)
    for d in range(4):
        e("v_mul_f32 v%d, v8, v%d" % (32 + d, 16 + d))
    for s in range(1, 4):
        for d in range(4):
            e("v_fmac_f32 v%d, v%d, v%d" % (32 + d, 8 + 2 * s, 16 + 4 * s + d))
    e("s_nop 1")
    for d in range(4):
        e("v_add_f32_dpp v%d, v%d, v%d row_ror:8%s" % (32 + d, 32 + d, 32 + d, DPP))
    e("v_lshrrev_b32 v6, 4, v0")
    e("v_lshlrev_b32 v6, 7, v6")
    e("v_lshl_add_u32 v6, v2, 4, v6")
    e("ds_write_b128 v6, v[32:35] offset:%d" % LDS_R)
    e("s_waitcnt lgkmcnt(0)")
    e("s_barrier")
    e("s_cmp_lg_u32 s%d, 0" % S_W)
    e("s_cbranch_scc1 L_end")
    e("v_lshlrev_b32 v6, 3, v0")
    e("v_lshlrev_b32 v7, 2, v0")
    e("s_mov_b64 exec, 0xffff")
    for r in range(16):
        e("ds_read_b64 v[%d:%d], v6 offset:%d" % (8 + 2 * r, 9 + 2 * r, LDS_R + 128 * r))
    e("s_lshl_b32 s%d, s%d, 10" % (S_T0, S_B))
    e("s_lshl_b32 s%d, s%d, 6" % (S_T1, S_H))
    e("s_add_u32 s%d, s%d, s%d" % (S_T0, S_T0, S_T1))
    e("s_waitcnt lgkmcnt(0)")
    for r in range(1, 16):
        e("v_add_f32 v8, v8, v%d" % (8 + 2 * r))
        e("v_add_f32 v9, v9, v%d" % (9 + 2 * r))
    e("v_cvt_pk_bf16_f32 v8, v8, v9")
    e("buffer_store_dword v8, v7, s[%d:%d], s%d offen" % (SRD_OUT, SRD_OUT + 3, S_T0))
    if STAMP and not EPI:
        e("s_waitcnt vmcnt(0)")
        stamp(7)
        e("s_lshl_b32 s%d, s2, 6" % S_T0)
        e("s_add_u32 s%d, s%d, %d" % (S_T0, S_T0, 1 << 20))
        e("s_mov_b64 exec, 1")
        e("v_mov_b32 v5, 0")
        for k in (5, 6, 7):
            e("v_mov_b32 v8, s%d" % (STR[k]))
            e("v_mov_b32 v9, s%d" % (STR[k] + 1))
            e("buffer_store_dwordx2 v[8:9], v5, s[%d:%d], s%d offen offset:%d" % (SRD_WS, SRD_WS + 3, S_T0, 8 * k))
            e("s_nop 2")
    e("L_end:")
    e("s_endpgm")

def kd(name, vgpr, sgpr):
    return """.amdhsa_kernel %s
  .amdhsa_next_free_vgpr %d
  .amdhsa_next_free_sgpr %d
  .amdhsa_accum_offset %d
  .amdhsa_group_segment_fixed_size 0
  .amdhsa_kernarg_size 104
  .amdhsa_user_sgpr_count 2
  .amdhsa_user_sgpr_kernarg_segment_ptr 1
  .amdhsa_system_sgpr_workgroup_id_x 1
  .amdhsa_float_denorm_mode_32 3
.end_amdhsa_kernel
""" % (name, vgpr, sgpr, (vgpr + 3) // 4 * 4)

k1()
txt = HEADER + "\n".join(L) + "\n" + '.section .rodata,"a"\n.p2align 6\n' + kd(KN, 256, 102)
open(OUT, "w").write(txt)
print("wrote", OUT, len(L), "lines")
```
